```python
import torch

def _softmax(x, axis=-1):
    return torch.softmax(x, dim=axis)
def _gelu(x):
    return torch.nn.functional.gelu(x, approximate="tanh")
def _silu(x):
    return torch.nn.functional.silu(x)
def _sigmoid(x):
    return torch.sigmoid(x)
def _layernorm(x, axis=-1, eps=1e-5):
    m = x.mean(dim=axis, keepdim=True)
    v = x.var(dim=axis, keepdim=True, unbiased=False)
    return (x - m) / torch.sqrt(v + eps)
def _scatter_add(tgt, idx, src, axis=0):
    return tgt.clone().index_add_(axis, idx, src)
def _segment_sum(src, seg, n):
    out = torch.zeros((n,) + src.shape[1:], dtype=src.dtype)
    return out.index_add_(0, seg, src)
def _pad(x, pw):
    flat = tuple(v for pair in reversed(pw) for v in pair)
    return torch.nn.functional.pad(x, flat)

kernel_name = 'gated_mix__mha_block__sliding_block__prompt'

def setup_inputs():

    _w = (lambda a: (lambda t: t.to(torch.bfloat16) if t.is_floating_point() else t)(torch.as_tensor(a)))
    def _A_setup():
        B, S, D, H = 1, 2048, 640, 32
        return {
            "x": _w((lambda *s: torch.randn(*s, dtype=torch.bfloat16) * 0.05)(B, S, D)),
            "wqkv": _w((lambda *s: torch.randn(*s, dtype=torch.bfloat16) * 3.2)(D, 3 * D)),
            "wo": _w((lambda *s: torch.randn(*s, dtype=torch.bfloat16) * 0.1)(D, D)),
        }
    _A_in = _A_setup()

    def _B_setup():
        B, S, D = 1, 2048, 640
        return {
            "x": _w((lambda *s: torch.randn(*s, dtype=torch.bfloat16) * 0.05)(B, S, D)),
            "wqkv": _w((lambda *s: torch.randn(*s, dtype=torch.bfloat16) * 3.2)(D, 3 * D)),
            "wo": _w((lambda *s: torch.randn(*s, dtype=torch.bfloat16) * 0.1)(D, D)),
        }
    _B_in = _B_setup()

    return {
        "A_x": _A_in["x"],
        "A_wqkv": _A_in["wqkv"],
        "A_wo": _A_in["wo"],
        "B_x": _B_in["x"],
        "B_wqkv": _B_in["wqkv"],
        "B_wo": _B_in["wo"],
        "gate_w": _w((lambda *s: torch.randn(*s, dtype=torch.bfloat16) * 0.05)(640) * 16.0),
    }

def reference(A_x, A_wqkv, A_wo, B_x, B_wqkv, B_wo, gate_w):
    def _A_ref(x, wqkv, wo):
        B, S, D = x.shape
        H = 32
        Dh = D // H
        qkv = (lambda x, *d: x.permute(*d))((x @ wqkv).reshape(B, S, 3, H, Dh), 2, 0, 3, 1, 4)
        q, k, v = qkv[0], qkv[1], qkv[2]
        scores = torch.einsum("bhqd,bhkd->bhqk", q, k) * (Dh ** -0.5)
        p = _softmax(scores, axis=-1)
        o = torch.einsum("bhqk,bhkd->bhqd", p, v)
        return (lambda x, *d: x.permute(*d))(o, 0, 2, 1, 3).reshape(B, S, D) @ wo

    def _B_ref(x, wqkv, wo):
        B, S, D = x.shape
        H = 32; Dh = D // H; W = 256
        qkv = (lambda x, *d: x.permute(*d))((x @ wqkv).reshape(B, S, 3, H, Dh), 2, 0, 3, 1, 4)
        q, k, v = qkv[0], qkv[1], qkv[2]
        scores = torch.einsum("bhqd,bhkd->bhqk", q, k) * (Dh ** -0.5)
        idx = torch.arange(S)
        mask = (idx[:, None] - idx[None, :] >= 0) & (idx[:, None] - idx[None, :] < W)
        scores = torch.where(mask[None, None], scores, -1e9)
        p = _softmax(scores, axis=-1)
        o = torch.einsum("bhqk,bhkd->bhqd", p, v)
        return (lambda x, *d: x.permute(*d))(o, 0, 2, 1, 3).reshape(B, S, D) @ wo

    x = A_x
    g = _sigmoid((x * gate_w).sum(-1, keepdims=True))
    a = _A_ref(x, A_wqkv, A_wo)
    b = _B_ref(x, B_wqkv, B_wo)
    return g * a + (1 - g) * b
```

```python
import sys

WS_KV = 0
WS_K2 = 0x0C00000
WS_Q1 = 0x0D00000
WS_Q2 = 0x1100000
WS_G = 0x1200000
WS_O = 0x1300000
WS_SIZE = 0x1300000 + 2048 * 2560
OOB = 0x7FFFFFF0

QSCALE = (20 ** -0.5) * 1.4426950408889634
TPRIME = 24.0


def f32bits(x):
    import struct
    return struct.unpack("<I", struct.pack("<f", x))[0]


class E:
    def __init__(self):
        self.l = []

    def __call__(self, s, *a):
        self.l.append("    " + (s.format(*a) if a else s))

    def lab(self, s):
        self.l.append(s + ":")

    def raw(self, s):
        self.l.append(s)

    def text(self):
        return "\n".join(self.l) + "\n"


def vr(b, n=1):
    return f"v{b}" if n == 1 else f"v[{b}:{b + n - 1}]"


def sr(b, n=1):
    return f"s{b}" if n == 1 else f"s[{b}:{b + n - 1}]"


def srd(e, d, base, nbytes):
    e("s_mov_b32 {}, {}", sr(d), sr(base))
    e("s_and_b32 {}, {}, 0xffff", sr(d + 1), sr(base + 1))
    e("s_mov_b32 {}, {}", sr(d + 2), hex(nbytes))
    e("s_mov_b32 {}, 0x00020000", sr(d + 3))


def div20(e, dst_q, dst_r, src, tmp):
    e("v_mul_u32_u24 {}, 3277, {}", vr(dst_q), vr(src))
    e("v_lshrrev_b32 {}, 16, {}", vr(dst_q), vr(dst_q))
    e("v_mul_u32_u24 {}, 20, {}", vr(tmp), vr(dst_q))
    e("v_sub_u32 {}, {}, {}", vr(dst_r), vr(src), vr(tmp))


def kd(name, vgpr, sgpr=102):
    return f"""
.amdhsa_kernel {name}
  .amdhsa_next_free_vgpr {vgpr}
  .amdhsa_next_free_sgpr {sgpr}
  .amdhsa_accum_offset {vgpr}
  .amdhsa_group_segment_fixed_size 0
  .amdhsa_kernarg_size 80
  .amdhsa_user_sgpr_count 2
  .amdhsa_user_sgpr_kernarg_segment_ptr 1
  .amdhsa_system_sgpr_workgroup_id_x 1
.end_amdhsa_kernel
"""


K1_XROW = 144
K1_WROW = 320
K1_XREG = 256 * K1_XROW
K1_WREG = 64 * K1_WROW
K1_STAGE = K1_XREG + K1_WREG
K1_LDS = 2 * K1_STAGE


def gen_k1(e):
    N = "qkv_kernel"
    e.raw(f".globl {N}\n.p2align 8\n.type {N},@function\n{N}:")
    e("s_cmp_ge_u32 s2, 256")
    e("s_cbranch_scc1 K1_END")
    e("s_load_dwordx4 s[4:7], s[0:1], 0")
    e("s_load_dwordx4 s[8:11], s[0:1], 24")
    e("s_load_dwordx2 s[24:25], s[0:1], 48")
    e("s_load_dwordx2 s[26:27], s[0:1], 72")
    e("v_and_b32 v1, 63, v0")
    e("v_lshrrev_b32 v2, 6, v0")
    e("s_nop 0")
    e("v_readfirstlane_b32 s28, v2")
    e("s_waitcnt lgkmcnt(0)")
    srd(e, 20, 26, WS_SIZE)
    e("s_cmp_ge_u32 s2, 240")
    e("s_cbranch_scc1 K1_GATE")
    e("s_and_b32 s29, s2, 7")
    e("s_lshr_b32 s30, s2, 3")
    e("s_cmp_ge_u32 s30, 15")
    e("s_cselect_b32 s31, 1, 0")
    e("s_cselect_b32 s6, s10, s6")
    e("s_cselect_b32 s7, s11, s7")
    e("s_mul_i32 s32, s31, 15")
    e("s_sub_u32 s32, s30, s32")
    srd(e, 12, 4, 2048 * 1280)
    srd(e, 16, 6, 640 * 3840)
    e("v_lshrrev_b32 v3, 3, v0")
    e("v_and_b32 v4, 7, v0")
    e("s_lshl_b32 s33, s29, 8")
    e("v_add_u32 v5, s33, v3")
    e("v_mul_u32_u24 v5, 1280, v5")
    e("v_lshl_add_u32 v200, v4, 4, v5")
    e("v_mul_u32_u24 v5, {}, v3", K1_XROW)
    e("v_lshl_add_u32 v201, v4, 4, v5")
    e("v_add_u32 v202, {}, v201", K1_STAGE)
    e("v_lshrrev_b32 v3, 4, v0")
    e("v_and_b32 v4, 15, v0")
    e("v_mul_u32_u24 v5, 3840, v3")
    e("v_lshl_add_u32 v5, v4, 4, v5")
    e("s_lshl_b32 s33, s32, 8")
    e("v_add_u32 v203, s33, v5")
    e("v_mul_u32_u24 v5, {}, v3", K1_WROW)
    e("v_lshl_add_u32 v5, v4, 4, v5")
    e("v_add_u32 v204, {}, v5", K1_XREG)
    e("v_add_u32 v205, {}, v204", K1_STAGE)
    e("s_and_b32 s34, s28, 3")
    e("s_lshr_b32 s35, s28, 2")
    e("v_and_b32 v3, 31, v1")
    e("v_lshrrev_b32 v4, 5, v1")
    e("s_lshl_b32 s33, s34, 6")
    e("v_add_u32 v5, s33, v3")
    e("v_mul_u32_u24 v5, {}, v5", K1_XROW)
    e("v_lshl_add_u32 v206, v4, 4, v5")
    e("v_add_u32 v207, {}, v206", K1_STAGE)
    e("v_lshrrev_b32 v5, 4, v1")
    e("v_bfe_u32 v6, v1, 2, 2")
    e("v_and_b32 v7, 3, v1")
    e("v_lshrrev_b32 v8, 1, v5")
    e("v_lshl_add_u32 v8, v8, 3, v6")
    e("v_mul_u32_u24 v8, {}, v8", K1_WROW)
    e("v_and_b32 v9, 1, v5")
    e("v_lshl_add_u32 v8, v9, 5, v8")
    e("v_lshl_add_u32 v8, v7, 3, v8")
    e("s_lshl_b32 s33, s35, 7")
    e("s_add_u32 s33, s33, {}", K1_XREG)
    e("v_add_u32 v208, s33, v8")
    e("v_add_u32 v209, {}, v208", K1_STAGE)
    for r in range(64, 128):
        e("v_mov_b32 {}, 0", vr(r))
    ST = 160

    def gload(kc_sreg_setup):
        e("s_lshl_b32 s37, s36, 7")
        for i in range(4):
            if i:
                e("s_add_u32 s37, s37, {}", 64 * 1280)
            e("buffer_load_dwordx4 {}, v200, s[12:15], s37 offen", vr(ST + 4 * i, 4))
        e("s_mul_i32 s37, s36, {}", 64 * 3840)
        e("buffer_load_dwordx4 {}, v203, s[16:19], s37 offen", vr(ST + 16, 4))
        e("s_add_u32 s37, s37, {}", 32 * 3840)
        e("buffer_load_dwordx4 {}, v203, s[16:19], s37 offen", vr(ST + 20, 4))

    def lwrite(stage):
        xa = 201 + stage
        wa = 204 + stage
        for i in range(4):
            e("ds_write_b128 {}, {} offset:{}", vr(xa), vr(ST + 4 * i, 4), i * 64 * K1_XROW)
        for i in range(2):
            e("ds_write_b128 {}, {} offset:{}", vr(wa), vr(ST + 16 + 4 * i, 4), i * 32 * K1_WROW)

    XF = [128, 144]
    def freads(stage, ks, fs):
        xa = 206 + stage
        wa = 208 + stage
        b = XF[fs]
        for i in range(2):
            e("ds_read_b128 {}, {} offset:{}", vr(b + 4 * i, 4), vr(xa), i * 32 * K1_XROW + ks * 32)
        for j in range(2):
            o = ks * 16 * K1_WROW + j * 64
            e("ds_read_b64_tr_b16 {}, {} offset:{}", vr(b + 8 + 4 * j, 2), vr(wa), o)
            e("ds_read_b64_tr_b16 {}, {} offset:{}", vr(b + 8 + 4 * j + 2, 2), vr(wa), o + 4 * K1_WROW)

    def mfmas(fs, vorient):
        b = XF[fs]
        for i in range(2):
            for j in range(2):
                acc = 64 + 16 * (2 * i + j)
                xf = vr(b + 4 * i, 4)
                wf = vr(b + 8 + 4 * j, 4)
                if vorient:
                    e("v_mfma_f32_32x32x16_bf16 {}, {}, {}, {}", vr(acc, 16), xf, wf, vr(acc, 16))
                else:
                    e("v_mfma_f32_32x32x16_bf16 {}, {}, {}, {}", vr(acc, 16), wf, xf, vr(acc, 16))

    def chunk(stage, vorient, last):
        if not last:
            e("s_add_u32 s36, s36, 1")
            gload(None)
        freads(stage, 0, 0)
        for ks in range(4):
            if ks < 3:
                freads(stage, ks + 1, (ks + 1) & 1)
                e("s_waitcnt lgkmcnt(6)")
            else:
                e("s_waitcnt lgkmcnt(0)")
            mfmas(ks & 1, vorient)
        if not last:
            e("s_waitcnt vmcnt(0)")
            lwrite(stage ^ 1)
            e("s_waitcnt lgkmcnt(0)")
            e("s_barrier")

    e("s_mov_b32 s36, 0")
    gload(None)
    e("s_waitcnt vmcnt(0)")
    lwrite(0)
    e("s_waitcnt lgkmcnt(0)")
    e("s_barrier")
    e("s_cmp_ge_u32 s32, 10")
    e("s_cbranch_scc1 K1_VLOOP")
    for vorient, lab in ((False, "K1_QK"), (True, "K1_V")):
        if vorient:
            e.lab("K1_VLOOP")
        e.lab(lab + "_LOOP")
        chunk(0, vorient, False)
        chunk(1, vorient, False)
        e("s_cmp_lt_u32 s36, 8")
        e("s_cbranch_scc1 {}_LOOP", lab)
        chunk(0, vorient, False)
        chunk(1, vorient, True)
        e("s_nop 15")
        e("s_nop 3")
        if vorient:
            k1_epi_v(e)
        else:
            k1_epi_qk(e)
        e("s_branch K1_END")

    e.lab("K1_GATE")
    srd(e, 12, 4, 2048 * 1280)
    srd(e, 16, 24, 1280)
    e("s_sub_u32 s29, s2, 240")
    e("s_lshl_b32 s29, s29, 7")
    e("s_lshl_b32 s30, s28, 4")
    e("s_add_u32 s29, s29, s30")
    e("v_lshlrev_b32 v3, 2, v1")
    for i in range(5):
        e("buffer_load_dword {}, v3, s[16:19], 0 offen offset:{}", vr(10 + i), i * 256)
    e("s_mul_i32 s30, s29, 1280")
    for r in range(16):
        for i in range(5):
            e("buffer_load_dword {}, v3, s[12:15], s30 offen offset:{}", vr(32 + r * 5 + i), i * 256)
        if r < 15:
            e("s_add_u32 s30, s30, 1280")
    e("s_waitcnt vmcnt(0)")
    for i in range(5):
        e("v_lshlrev_b32 {}, 16, {}", vr(16 + 2 * i), vr(10 + i))
        e("v_and_b32 {}, 0xffff0000, {}", vr(17 + 2 * i), vr(10 + i))
    for r in range(16):
        acc = 112 + r
        for i in range(5):
            x = 32 + r * 5 + i
            e("v_lshlrev_b32 v4, 16, {}", vr(x))
            e("v_and_b32 v5, 0xffff0000, {}", vr(x))
            if i == 0:
                e("v_mul_f32 {}, v4, {}", vr(acc), vr(16))
            else:
                e("v_fmac_f32 {}, v4, {}", vr(acc), vr(16 + 2 * i))
            e("v_fmac_f32 {}, v5, {}", vr(acc), vr(17 + 2 * i))
    for hop, patt in enumerate((0x041F, 0x081F, 0x101F, 0x201F, 0x401F)):
        for r in range(16):
            e("ds_swizzle_b32 {}, {} offset:{}", vr(128 + r), vr(112 + r), hex(patt))
        e("s_waitcnt lgkmcnt(0)")
        for r in range(16):
            e("v_add_f32 {0}, {0}, {1}", vr(112 + r), vr(128 + r))
    for r in range(16):
        e("v_mov_b32 {}, {}", vr(128 + r), vr(112 + r))
    e("s_nop 1")
    for r in range(16):
        e("v_permlane32_swap_b32 {}, {}", vr(112 + r), vr(128 + r))
    for r in range(16):
        e("v_add_f32 {0}, {0}, {1}", vr(112 + r), vr(128 + r))
    e("v_mov_b32 v4, {}", vr(112))
    for r in range(1, 16):
        e("v_cmp_eq_u32 vcc, {}, v1", r)
        e("s_nop 1")
        e("v_cndmask_b32 v4, v4, {}, vcc", vr(112 + r))
    e("v_mul_f32 v4, {}, v4", hex(f32bits(-1.4426950408889634)))
    e("v_exp_f32 v4, v4")
    e("s_nop 0")
    e("v_add_f32 v4, 1.0, v4")
    e("v_rcp_f32 v4, v4")
    e("v_add_u32 v5, s29, v1")
    e("v_lshlrev_b32 v5, 2, v5")
    e("v_add_u32 v5, {}, v5", hex(WS_G))
    e("v_cmp_gt_u32 vcc, 16, v1")
    e("v_mov_b32 v6, {}", hex(OOB))
    e("s_nop 0")
    e("v_cndmask_b32 v5, v6, v5, vcc")
    e("buffer_store_dword v4, v5, s[20:23], 0 offen")
    e.lab("K1_END")
    e("s_endpgm")


def k1_epi_qk(e):
    e("v_and_b32 v3, 31, v1")
    e("v_lshrrev_b32 v4, 5, v1")
    e("s_cmp_lt_u32 s32, 5")
    e("s_cselect_b32 s40, 1, 0")
    e("s_sub_u32 s41, s32, 5")
    e("s_cmp_lt_u32 s32, 5")
    e("s_cselect_b32 s41, s32, s41")
    e("s_movk_i32 s42, 3072")
    e("s_mov_b32 s43, {}", hex(WS_KV))
    e("s_mov_b32 s44, {}", hex(WS_K2))
    e("s_cmp_eq_u32 s40, 1")
    e("s_cbranch_scc0 K1_QKISK")
    e("s_movk_i32 s42, 1024")
    e("s_mov_b32 s43, {}", hex(WS_Q1))
    e("s_mov_b32 s44, {}", hex(WS_Q2))
    e("s_mov_b32 s47, {}", hex(f32bits(QSCALE)))
    for r in range(64, 128):
        e("v_mul_f32 {0}, s47, {0}", vr(r))
    e.lab("K1_QKISK")
    e("s_lshl_b32 s45, s31, 11")
    e("s_lshl_b32 s46, s29, 3")
    e("s_add_u32 s45, s45, s46")
    e("s_lshl_b32 s46, s34, 1")
    e("s_add_u32 s45, s45, s46")
    e("s_lshl_b32 s46, s41, 5")
    e("s_lshl_b32 s47, s35, 4")
    e("s_add_u32 s46, s46, s47")
    e("v_add_u32 v5, s46, v4")
    for j in range(2):
        for g in range(4):
            e("v_add_u32 v6, {}, v5", j * 8 + 2 * g)
            e("v_mul_u32_u24 v7, 13108, v6")
            e("v_lshrrev_b32 v7, 16, v7")
            e("v_mul_u32_u24 v8, 5, v7")
            e("v_sub_u32 v8, v6, v8")
            e("v_lshlrev_b32 v9, 6, v7")
            e("v_add_u32 v9, s45, v9")
            e("v_mul_lo_u32 v10, v9, s42")
            e("v_add_u32 v10, s43, v10")
            e("v_lshrrev_b32 v11, 1, v8")
            e("v_lshl_add_u32 v11, v11, 5, v3")
            e("v_lshl_add_u32 v10, v11, 4, v10")
            e("v_and_b32 v11, 1, v8")
            e("v_lshl_add_u32 v10, v11, 3, v10")
            e("v_lshl_add_u32 v12, v9, 8, s44")
            e("v_lshl_add_u32 v12, v3, 3, v12")
            e("v_cmp_eq_u32 vcc, 4, v8")
            e("v_mov_b32 v13, s42")
            e("v_mov_b32 v14, 256")
            e("v_cndmask_b32 v10, v10, v12, vcc")
            e("v_cndmask_b32 v13, v13, v14, vcc")
            e("v_add_u32 v13, v10, v13")
            for i in range(2):
                acc = 64 + 16 * (2 * i + j) + 4 * g
                e("v_cvt_pk_bf16_f32 v16, {}, {}", vr(acc), vr(acc + 1))
                e("v_cvt_pk_bf16_f32 v17, {}, {}", vr(acc + 2), vr(acc + 3))
                e("buffer_store_dwordx2 v[16:17], {}, s[20:23], 0 offen", vr(10 if i == 0 else 13))
                e("s_nop 0")


def k1_epi_v(e):
    e("v_and_b32 v3, 31, v1")
    e("v_lshrrev_b32 v4, 5, v1")
    e("s_sub_u32 s41, s32, 10")
    e("s_lshl_b32 s46, s41, 7")
    e("s_lshl_b32 s47, s35, 6")
    e("s_add_u32 s46, s46, s47")
    e("s_lshl_b32 s45, s31, 11")
    e("s_lshl_b32 s47, s29, 3")
    e("s_add_u32 s45, s45, s47")
    e("s_lshl_b32 s47, s34, 1")
    e("s_add_u32 s45, s45, s47")
    e("s_movk_i32 s48, 3072")
    e("v_mov_b32 v20, 0x3f803f80")
    e("v_mov_b32 v21, 0x3f803f80")
    e("v_mov_b32 v22, 0x3f803f80")
    e("v_mov_b32 v23, 0x3f803f80")
    for j in range(2):
        e("v_add_u32 v5, s46, v3")
        if j:
            e("v_add_u32 v5, 32, v5")
        div20(e, 7, 8, 5, 9)
        e("v_lshlrev_b32 v9, 6, v7")
        e("v_add_u32 v9, s45, v9")
        e("v_mul_u32_u24 v10, 3072, v9")
        e("v_lshl_add_u32 v11, v4, 5, v8")
        e("v_lshl_add_u32 v10, v11, 4, v10")
        e("v_add_u32 v10, 1024, v10")
        e("v_add_u32 v12, 320, v10")
        e("v_mov_b32 v13, {}", hex(OOB))
        e("v_cmp_eq_u32 vcc, 0, v8")
        e("s_nop 1")
        e("v_cndmask_b32 v12, v13, v12, vcc")
        for i in range(2):
            acc = 64 + 16 * (2 * i + j)
            so = "0" if i == 0 else "s48"
            for half in range(2):
                for q in range(4):
                    e("v_cvt_pk_bf16_f32 {}, {}, {}", vr(16 + q), vr(acc + 8 * half + 2 * q), vr(acc + 8 * half + 2 * q + 1))
                e("buffer_store_dwordx4 v[16:19], v10, s[20:23], {} offen offset:{}", so, half * 1024)
                e("buffer_store_dwordx4 v[20:23], v12, s[20:23], {} offen offset:{}", so, half * 1024)
                e("s_nop 1")


K2_MAIN = 16 * 3072
K2_BUF = K2_MAIN + 4096
K2_LDS = 2 * K2_BUF + 512

S0, S1, PP, PB, CC, OO = 0 + 32, 48, 64, 80, 96, 112
Q1, Q2 = 128, 132
KB = [136, 144]
VB = [152, 160]
STG = 176
NEGINF = 202
CVAL = 203
T0, T1, T2, T3 = 204, 205, 206, 207
AK, AK2 = 208, 209
AKB, AK2B = 210, 211
GV = 212


def blk_softmax(e, cur, nxt, tag, uid, masked=None):
    for r in range(16):
        e("v_exp_f32 {}, {}", vr(PP + r), vr(cur + r))
    for r in range(8):
        e("v_cvt_pk_bf16_f32 {}, {}, {}", vr(PB + r), vr(PP + 2 * r), vr(PP + 2 * r + 1))
    e("v_or3_b32 {}, {}, {}, {}", vr(T0), vr(PB), vr(PB + 1), vr(PB + 2))
    e("v_or3_b32 {}, {}, {}, {}", vr(T1), vr(PB + 3), vr(PB + 4), vr(PB + 5))
    e("v_or3_b32 {}, {}, {}, {}", vr(T0), vr(T0), vr(PB + 6), vr(PB + 7))
    e("v_or_b32 {0}, {0}, {1}", vr(T0), vr(T1))
    e("v_and_b32 {0}, 0x40004000, {0}", vr(T0))
    e("v_cmp_ne_u32 vcc, 0, {}", vr(T0))
    e("s_cbranch_vccnz RARE_{}", uid)
    e.lab(f"BACK_{uid}")


def rare_path(e, cur, nxt, uid, first=False, ret=True):
    e.lab(f"RARE_{uid}")
    e("v_max3_f32 {}, {}, {}, {}", vr(T0), vr(cur), vr(cur + 1), vr(cur + 2))
    e("v_max3_f32 {}, {}, {}, {}", vr(T1), vr(cur + 3), vr(cur + 4), vr(cur + 5))
    for r in range(6, 14, 4):
        e("v_max3_f32 {0}, {0}, {1}, {2}", vr(T0), vr(cur + r), vr(cur + r + 1))
        e("v_max3_f32 {0}, {0}, {1}, {2}", vr(T1), vr(cur + r + 2), vr(cur + r + 3))
    e("v_max3_f32 {0}, {0}, {1}, {2}", vr(T0), vr(cur + 14), vr(cur + 15))
    e("v_max_f32 {0}, {0}, {1}", vr(T0), vr(T1))
    e("v_mov_b32 {}, {}", vr(T1), vr(T0))
    e("s_nop 1")
    e("v_permlane32_swap_b32 {}, {}", vr(T0), vr(T1))
    e("v_max_f32 {0}, {0}, {1}", vr(T0), vr(T1))
    e("v_add_f32 {0}, {1}, {0}", vr(T0), hex(f32bits(TPRIME)))
    if not first:
        e("v_max_f32 {0}, 0, {0}", vr(T0))
    e("v_max_f32 {}, 0, {}", vr(T1), vr(T0))
    e("v_sub_f32 {}, 0, {}", vr(T1), vr(T1))
    e("v_exp_f32 {0}, {0}", vr(T1))
    e("v_sub_f32 {0}, {0}, {1}", vr(CVAL), vr(T0))
    for r in range(16):
        e("v_mov_b32 {}, {}", vr(CC + r), vr(CVAL))
    for r in range(16):
        e("v_mul_f32 {0}, {0}, {1}", vr(OO + r), vr(T1))
    for r in range(16):
        e("v_sub_f32 {0}, {0}, {1}", vr(cur + r), vr(T0))
    if nxt is not None:
        for r in range(16):
            e("v_sub_f32 {0}, {0}, {1}", vr(nxt + r), vr(T0))
    for r in range(16):
        e("v_exp_f32 {}, {}", vr(PP + r), vr(cur + r))
    for r in range(8):
        e("v_cvt_pk_bf16_f32 {}, {}, {}", vr(PB + r), vr(PP + 2 * r), vr(PP + 2 * r + 1))
    e("s_nop 1")
    if ret:
        e("s_branch BACK_{}", uid)


def qk(e, dst, kb):
    e("v_mfma_f32_32x32x16_bf16 {}, {}, {}, {}", vr(dst, 16), vr(kb, 4), vr(Q1, 4), vr(CC, 16))
    e("v_mfma_f32_32x32x16_bf16 {0}, {1}, {2}, {0}", vr(dst, 16), vr(kb + 4, 4), vr(Q2, 4))


def pv(e, vb):
    e("v_mfma_f32_32x32x16_bf16 {0}, {1}, {2}, {0}", vr(OO, 16), vr(vb, 4), vr(PB, 4))
    e("v_mfma_f32_32x32x16_bf16 {0}, {1}, {2}, {0}", vr(OO, 16), vr(vb + 4, 4), vr(PB + 4, 4))


def rd_k(e, kb, a, a2, blk):
    e("ds_read_b128 {}, {} offset:{}", vr(kb, 4), vr(a), blk * 3072)
    e("ds_read_b64 {}, {} offset:{}", vr(kb + 4, 2), vr(a2), blk * 256)


def rd_v(e, vb, a, blk):
    e("ds_read_b128 {}, {} offset:{}", vr(vb, 4), vr(a), blk * 3072 + 1024)
    e("ds_read_b128 {}, {} offset:{}", vr(vb + 4, 4), vr(a), blk * 3072 + 2048)


def attn_epilogue(e, p):
    e("s_nop 15")
    e("v_mov_b32 {}, {}", vr(T0), vr(OO + 8))
    e("v_mov_b32 {}, {}", vr(T1), vr(OO + 8))
    e("s_nop 1")
    e("v_permlane32_swap_b32 {}, {}", vr(T0), vr(T1))
    e("v_rcp_f32 {0}, {0}", vr(T1))
    e("s_nop 0")
    for r in range(12):
        e("v_mul_f32 {0}, {0}, {1}", vr(OO + r), vr(T1))
    for g in range(3):
        e("v_cvt_pk_bf16_f32 {}, {}, {}", vr(T2), vr(OO + 4 * g), vr(OO + 4 * g + 1))
        e("v_cvt_pk_bf16_f32 {}, {}, {}", vr(T3), vr(OO + 4 * g + 2), vr(OO + 4 * g + 3))
        e("buffer_store_dwordx2 {}, {}, s[20:23], 0 offen offset:{}", vr(T2, 2), vr(214 if g == 2 else 213), p * 1280 + g * 16)
        e("s_nop 0")


def gen_k2(e):
    N = "attn_kernel"
    e.raw(f".globl {N}\n.p2align 8\n.type {N},@function\n{N}:")
    e("s_cmp_ge_u32 s2, 256")
    e("s_cbranch_scc1 K2_END")
    e("s_load_dwordx2 s[26:27], s[0:1], 72")
    e("v_and_b32 v1, 63, v0")
    e("v_lshrrev_b32 v2, 6, v0")
    e("s_nop 0")
    e("v_readfirstlane_b32 s28, v2")
    e("s_and_b32 s29, s2, 31")
    e("s_lshr_b32 s30, s2, 5")
    e("s_waitcnt lgkmcnt(0)")
    srd(e, 20, 26, WS_SIZE)
    e("v_and_b32 v3, 31, v1")
    e("v_lshrrev_b32 v4, 5, v1")
    e("v_lshlrev_b32 v5, 4, v0")
    e("v_lshlrev_b32 v6, 3, v0")
    e("v_add_u32 v7, {}, v6", K2_MAIN)
    e("s_lshl_b32 s31, s29, 6")
    e("s_lshl_b32 s32, s30, 3")
    e("s_add_u32 s32, s32, s28")
    e("v_lshlrev_b32 v8, 4, v1")
    e("v_lshlrev_b32 v9, 3, v3")
    e("v_mov_b32 v10, {}", hex(OOB))
    e("v_cmp_eq_u32 vcc, 0, v4")
    e("s_nop 1")
    e("v_cndmask_b32 v10, v10, v9, vcc")
    e("v_mov_b32 {}, v8", vr(AK))
    e("v_add_u32 {}, {}, v9", vr(AK2), K2_MAIN)

    def load_q(p):
        e("s_add_u32 s33, s31, s32")
        if p:
            e("s_add_u32 s33, s33, 2048")
        e("s_lshl_b32 s34, s33, 10")
        e("s_add_u32 s34, s34, {}", hex(WS_Q1))
        e("s_lshl_b32 s35, s33, 8")
        e("s_add_u32 s35, s35, {}", hex(WS_Q2))
        e("buffer_load_dwordx4 {}, v8, s[20:23], s34 offen", vr(Q1, 4))
        e("buffer_load_dwordx2 {}, v10, s[20:23], s35 offen", vr(Q2, 2))
        e("v_mov_b32 {}, 0", vr(Q2 + 2))
        e("v_mov_b32 {}, 0", vr(Q2 + 3))

    def stage_load():
        e("s_mul_i32 s37, s36, 3072")
        for i in range(6):
            e("buffer_load_dwordx4 {}, v5, s[20:23], s37 offen", vr(STG + 4 * i, 4))
            if i < 5:
                e("s_add_u32 s37, s37, 8192")
        e("s_lshl_b32 s37, s36, 8")
        e("s_add_u32 s37, s37, {}", hex(WS_K2))
        e("buffer_load_dwordx2 {}, v6, s[20:23], s37 offen", vr(STG + 24, 2))

    def stage_write():
        e("v_add_u32 v11, s38, v5")
        e("v_add_u32 v12, s38, v7")
        for i in range(6):
            e("ds_write_b128 v11, {} offset:{}", vr(STG + 4 * i, 4), i * 8192)
        e("ds_write_b64 v12, {}", vr(STG + 24, 2))

    for kb in KB:
        e("v_mov_b32 {}, 0", vr(kb + 6))
        e("v_mov_b32 {}, 0", vr(kb + 7))
    e("v_mov_b32 {}, 0xff800000", vr(NEGINF))
    e("v_lshlrev_b32 v11, 2, v4")
    for r in range(16):
        e("v_add_u32 v12, {}, v11", (r % 4) + 8 * (r // 4))
        e("v_cmp_le_u32 {}, v12, v3", sr(64 + 2 * r, 2))
    e("s_lshl_b32 s33, s32, 5")
    e("v_add_u32 v11, s33, v3")
    e("v_mul_u32_u24 v11, 2560, v11")
    e("s_mul_i32 s33, s29, 40")
    e("s_add_u32 s33, s33, {}", hex(WS_O))
    e("v_add_u32 v11, s33, v11")
    e("v_lshl_add_u32 v213, v4, 3, v11")
    e("v_mov_b32 v12, {}", hex(OOB - 4096))
    e("v_cmp_eq_u32 vcc, 0, v4")
    e("s_nop 1")
    e("v_cndmask_b32 v214, v12, v213, vcc")

    load_q(0)
    e("s_mov_b32 s36, s31")
    stage_load()
    e("s_waitcnt vmcnt(0)")
    e("s_mov_b32 s38, 0")
    stage_write()
    e("s_waitcnt lgkmcnt(0)")
    e("s_barrier")
    for r in range(16):
        e("v_mov_b32 {}, 0", vr(CC + r))
        e("v_mov_b32 {}, 0", vr(OO + r))
    e("v_mov_b32 {}, 0", vr(CVAL))
    e("s_mov_b32 s39, 0")
    rare = []
    e.lab("K2_TILE")
    e("s_add_u32 s36, s36, 16")
    e("s_cmp_lt_u32 s39, 3")
    e("s_cbranch_scc1 K2_PF")
    e("s_lshl_b32 s40, s30, 3")
    e("s_max_u32 s40, s40, 8")
    e("s_sub_u32 s40, s40, 8")
    e("s_add_u32 s36, s31, s40")
    e("s_add_u32 s36, s36, 2048")
    e.lab("K2_PF")
    stage_load()
    rd_k(e, KB[0], AK, AK2, 0)
    rd_k(e, KB[1], AK, AK2, 1)
    rd_v(e, VB[0], AK, 0)
    e("s_waitcnt lgkmcnt(4)")
    qk(e, S0, KB[0])
    e("s_cmp_lg_u32 s39, 0")
    e("s_cbranch_scc1 K2_NOINIT")
    e("s_nop 15")
    rare_path(e, S0, None, "INIT", first=True, ret=False)
    e.lab("K2_NOINIT")
    e("s_nop 3")
    e("s_mov_b32 s41, 0")
    e("v_mov_b32 v13, {}", vr(AK))
    e("v_mov_b32 v14, {}", vr(AK2))
    e.lab("K2_BLK")
    for half in range(2):
        cur, nxt = (S0, S1) if half == 0 else (S1, S0)
        e("s_waitcnt lgkmcnt(0)")
        qk(e, nxt, KB[half ^ 1])
        rd_k(e, KB[half], 13, 14, half + 2)
        rd_v(e, VB[half ^ 1], 13, half + 1)
        blk_softmax(e, cur, nxt, "A", f"A{half}")
        rare.append((cur, nxt, f"A{half}"))
        pv(e, VB[half])
    e("v_add_u32 v13, {}, v13", 2 * 3072)
    e("v_add_u32 v14, {}, v14", 2 * 256)
    e("s_add_u32 s41, s41, 1")
    e("s_cmp_lt_u32 s41, 8")
    e("s_cbranch_scc1 K2_BLK")
    e("s_waitcnt vmcnt(0) lgkmcnt(0)")
    e("s_xor_b32 s38, s38, {}", K2_BUF)
    stage_write()
    e("v_lshlrev_b32 {}, 4, v1", vr(AK))
    e("v_add_u32 {0}, s38, {0}", vr(AK))
    e("v_lshlrev_b32 {}, 3, v3", vr(AK2))
    e("v_add_u32 {0}, s38, {0}", vr(AK2))
    e("v_add_u32 {0}, {1}, {0}", vr(AK2), K2_MAIN)
    e("s_waitcnt lgkmcnt(0)")
    e("s_barrier")
    e("s_add_u32 s39, s39, 1")
    e("s_cmp_lt_u32 s39, 4")
    e("s_cbranch_scc1 K2_TILE")
    attn_epilogue(e, 0)

    load_q(1)
    for r in range(16):
        e("v_mov_b32 {}, 0", vr(CC + r))
        e("v_mov_b32 {}, 0", vr(OO + r))
    e("v_mov_b32 {}, 0", vr(CVAL))
    e("s_lshl_b32 s40, s30, 3")
    e("s_max_u32 s40, s40, 8")
    e("s_sub_u32 s40, s40, 8")
    e("s_sub_u32 s42, s32, s40")
    e("s_mul_i32 s43, s42, 3072")
    e("s_lshl_b32 s44, s42, 8")
    e("v_add_u32 v13, s43, {}", vr(AK))
    e("v_add_u32 v14, s44, {}", vr(AK2))
    rd_k(e, KB[0], 13, 14, 0)
    rd_v(e, VB[0], 13, 0)
    e("s_waitcnt vmcnt(0) lgkmcnt(0)")
    qk(e, S0, KB[0])
    e("s_nop 15")
    for r in range(16):
        e("v_cndmask_b32 {0}, {1}, {0}, {2}", vr(S0 + r), vr(NEGINF), sr(64 + 2 * r, 2))
    rare_path(e, S0, None, "BINIT", first=True, ret=False)
    pv(e, VB[0])
    e("s_cmp_lt_u32 s32, 8")
    e("s_cbranch_scc1 K2_BNOEDGE")
    e("s_sub_u32 s45, s42, 8")
    e("s_mul_i32 s43, s45, 3072")
    e("s_lshl_b32 s44, s45, 8")
    e("v_add_u32 v13, s43, {}", vr(AK))
    e("v_add_u32 v14, s44, {}", vr(AK2))
    rd_k(e, KB[0], 13, 14, 0)
    rd_v(e, VB[0], 13, 0)
    e("s_waitcnt lgkmcnt(0)")
    qk(e, S0, KB[0])
    e("s_nop 15")
    for r in range(16):
        e("v_cndmask_b32 {0}, {0}, {1}, {2}", vr(S0 + r), vr(NEGINF), sr(64 + 2 * r, 2))
    blk_softmax(e, S0, None, "B", "BE")
    rare.append((S0, None, "BE"))
    e("s_nop 0")
    pv(e, VB[0])
    e.lab("K2_BNOEDGE")
    e("s_min_u32 s45, s32, 7")
    e("s_cmp_eq_u32 s45, 0")
    e("s_cbranch_scc1 K2_BDONE")
    e("s_sub_u32 s46, s42, s45")
    e("s_mul_i32 s43, s46, 3072")
    e("s_lshl_b32 s44, s46, 8")
    e("v_add_u32 v13, s43, {}", vr(AK))
    e("v_add_u32 v14, s44, {}", vr(AK2))
    e.lab("K2_BMID")
    rd_k(e, KB[0], 13, 14, 0)
    rd_v(e, VB[0], 13, 0)
    e("s_waitcnt lgkmcnt(0)")
    qk(e, S0, KB[0])
    e("s_nop 15")
    blk_softmax(e, S0, None, "B", "BM")
    rare.append((S0, None, "BM"))
    e("s_nop 0")
    pv(e, VB[0])
    e("v_add_u32 v13, 3072, v13")
    e("v_add_u32 v14, 256, v14")
    e("s_sub_u32 s45, s45, 1")
    e("s_cmp_lg_u32 s45, 0")
    e("s_cbranch_scc1 K2_BMID")
    e.lab("K2_BDONE")
    attn_epilogue(e, 1)
    e.lab("K2_END")
    e("s_endpgm")
    for cur, nxt, uid in rare:
        rare_path(e, cur, nxt, uid)


K3_XH = 64 * 144
K3_WH = 64 * 160
K3_STAGE = 2 * K3_XH + 2 * K3_WH
K3_LDS = 2 * K3_STAGE


def gen_k3(e):
    N = "oproj_kernel"
    e.raw(f".globl {N}\n.p2align 8\n.type {N},@function\n{N}:")
    e("s_cmp_ge_u32 s2, 256")
    e("s_cbranch_scc1 K3_END")
    e("s_load_dwordx2 s[4:5], s[0:1], 16")
    e("s_load_dwordx2 s[6:7], s[0:1], 40")
    e("s_load_dwordx2 s[8:9], s[0:1], 56")
    e("s_load_dwordx2 s[26:27], s[0:1], 72")
    e("v_and_b32 v1, 63, v0")
    e("v_lshrrev_b32 v2, 6, v0")
    e("s_nop 0")
    e("v_readfirstlane_b32 s28, v2")
    e("s_and_b32 s29, s2, 7")
    e("s_lshr_b32 s30, s2, 3")
    e("s_waitcnt lgkmcnt(0)")
    srd(e, 20, 26, WS_SIZE)
    srd(e, 12, 4, 640 * 1280)
    srd(e, 16, 6, 640 * 1280)
    srd(e, 24, 8, 2048 * 1280)
    e("v_lshrrev_b32 v3, 3, v0")
    e("v_and_b32 v4, 7, v0")
    e("s_lshl_b32 s33, s30, 6")
    e("v_add_u32 v5, s33, v3")
    e("v_mul_u32_u24 v5, 2560, v5")
    e("v_lshl_add_u32 v5, v4, 4, v5")
    e("v_add_u32 v120, {}, v5", hex(WS_O))
    e("v_mul_u32_u24 v5, 144, v3")
    e("v_lshl_add_u32 v121, v4, 4, v5")
    e("v_add_u32 v122, {}, v121", K3_STAGE)
    for ab in range(2):
        e("v_add_u32 v5, {}, v0", 512 * ab)
        e("v_mul_u32_u24 v6, 6554, v5")
        e("v_lshrrev_b32 v6, 16, v6")
        e("v_mul_u32_u24 v7, 10, v6")
        e("v_sub_u32 v7, v5, v7")
        e("v_mul_u32_u24 v8, 1280, v6")
        e("v_lshl_add_u32 v8, v7, 4, v8")
        e("s_mul_i32 s33, s29, 160")
        e("v_add_u32 {}, s33, v8", vr(123 + ab))
        e("v_mul_u32_u24 v8, 160, v6")
        e("v_lshl_add_u32 v8, v7, 4, v8")
        e("v_add_u32 {}, {}, v8", vr(125 + 2 * ab), 2 * K3_XH)
        e("v_add_u32 {}, {}, {}", vr(126 + 2 * ab), K3_STAGE, vr(125 + 2 * ab))
    e("v_mov_b32 v9, {}", hex(OOB))
    e("v_cmp_gt_u32 vcc, 128, v0")
    e("s_nop 1")
    e("v_cndmask_b32 v124, v9, v124, vcc")
    e("s_lshr_b32 s34, s28, 2")
    e("s_and_b32 s35, s28, 3")
    e("v_and_b32 v3, 15, v1")
    e("v_lshrrev_b32 v4, 4, v1")
    e("s_lshl_b32 s33, s35, 4")
    e("v_add_u32 v5, s33, v3")
    e("v_mul_u32_u24 v5, 144, v5")
    e("v_lshl_add_u32 v5, v4, 3, v5")
    e("s_mul_i32 s33, s34, {}", K3_XH)
    e("v_add_u32 v130, s33, v5")
    e("v_add_u32 v131, {}, v130", K3_STAGE)
    e("v_bfe_u32 v6, v1, 2, 2")
    e("v_and_b32 v7, 3, v1")
    e("v_lshl_add_u32 v8, v4, 2, v6")
    e("v_mul_u32_u24 v8, 160, v8")
    e("v_lshl_add_u32 v8, v7, 3, v8")
    e("s_mul_i32 s33, s34, {}", K3_WH)
    e("s_add_u32 s33, s33, {}", 2 * K3_XH)
    e("v_add_u32 v132, s33, v8")
    e("v_add_u32 v133, {}, v132", K3_STAGE)
    for r in range(32, 52):
        e("v_mov_b32 {}, 0", vr(r))
    ST = 64

    def gload():
        e("s_lshl_b32 s37, s36, 7")
        e("buffer_load_dwordx4 {}, v120, s[20:23], s37 offen", vr(ST, 4))
        e("s_add_u32 s37, s37, 1280")
        e("buffer_load_dwordx4 {}, v120, s[20:23], s37 offen", vr(ST + 4, 4))
        e("s_mul_i32 s37, s36, {}", 64 * 1280)
        e("buffer_load_dwordx4 {}, v123, s[12:15], s37 offen", vr(ST + 8, 4))
        e("buffer_load_dwordx4 {}, v124, s[12:15], s37 offen", vr(ST + 12, 4))
        e("buffer_load_dwordx4 {}, v123, s[16:19], s37 offen", vr(ST + 16, 4))
        e("buffer_load_dwordx4 {}, v124, s[16:19], s37 offen", vr(ST + 20, 4))

    def lwrite(stage):
        e("ds_write_b128 {}, {}", vr(121 + stage), vr(ST, 4))
        e("ds_write_b128 {}, {} offset:{}", vr(121 + stage), vr(ST + 4, 4), K3_XH)
        e("ds_write_b128 {}, {}", vr(125 + stage), vr(ST + 8, 4))
        e("ds_write_b128 {}, {} offset:{}", vr(125 + stage), vr(ST + 16, 4), K3_WH)
        e("v_cmp_gt_u32 vcc, 128, v0")
        e("s_and_saveexec_b64 s[40:41], vcc")
        e("s_cbranch_execz K3_SKIPW{}", lwrite.n)
        e("ds_write_b128 {}, {}", vr(127 + stage), vr(ST + 12, 4))
        e("ds_write_b128 {}, {} offset:{}", vr(127 + stage), vr(ST + 20, 4), K3_WH)
        e.lab(f"K3_SKIPW{lwrite.n}")
        e("s_mov_b64 exec, s[40:41]")
        lwrite.n += 1
    lwrite.n = 0

    FR = [8, 88]
    def freads(stage, ks, fs):
        b = FR[fs]
        e("ds_read_b64 {}, {} offset:{}", vr(b, 2), vr(130 + stage), ks * 64)
        e("ds_read_b64 {}, {} offset:{}", vr(b + 2, 2), vr(130 + stage), ks * 64 + 32)
        for jn in range(5):
            o = ks * 32 * 160 + jn * 32
            e("ds_read_b64_tr_b16 {}, {} offset:{}", vr(b + 4 + 4 * jn, 2), vr(132 + stage), o)
            e("ds_read_b64_tr_b16 {}, {} offset:{}", vr(b + 4 + 4 * jn + 2, 2), vr(132 + stage), o + 16 * 160)

    def mf(fs):
        b = FR[fs]
        for jn in range(5):
            e("v_mfma_f32_16x16x32_bf16 {0}, {1}, {2}, {0}", vr(32 + 4 * jn, 4), vr(b + 4 + 4 * jn, 4), vr(b, 4))

    def chunk(stage, last):
        if not last:
            e("s_add_u32 s36, s36, 1")
            gload()
        freads(stage, 0, 0)
        freads(stage, 1, 1)
        e("s_waitcnt lgkmcnt(12)")
        mf(0)
        e("s_waitcnt lgkmcnt(0)")
        mf(1)
        if not last:
            e("s_waitcnt vmcnt(0)")
            lwrite(stage ^ 1)
            e("s_waitcnt lgkmcnt(0)")
            e("s_barrier")

    e("s_mov_b32 s36, 0")
    gload()
    e("s_waitcnt vmcnt(0)")
    lwrite(0)
    e("s_waitcnt lgkmcnt(0)")
    e("s_barrier")
    e.lab("K3_LOOP")
    chunk(0, False)
    chunk(1, False)
    e("s_cmp_lt_u32 s36, 8")
    e("s_cbranch_scc1 K3_LOOP")
    chunk(0, False)
    chunk(1, True)
    e("s_lshl_b32 s33, s30, 6")
    e("s_lshl_b32 s37, s35, 4")
    e("s_add_u32 s33, s33, s37")
    e("v_add_u32 v5, s33, v3")
    e("v_lshlrev_b32 v6, 2, v5")
    e("v_add_u32 v6, {}, v6", hex(WS_G))
    e("buffer_load_dword v7, v6, s[20:23], 0 offen")
    e("s_barrier")
    e("s_waitcnt vmcnt(0)")
    e("s_nop 7")
    e("s_mul_i32 s33, s35, 5120")
    e("v_lshlrev_b32 v8, 4, v1")
    e("v_add_u32 v8, s33, v8")
    e("s_cmp_eq_u32 s34, 0")
    e("s_cbranch_scc1 K3_RED")
    e("v_sub_f32 v7, 1.0, v7")
    for r in range(20):
        e("v_mul_f32 {0}, {0}, v7", vr(32 + r))
    for jn in range(5):
        e("ds_write_b128 v8, {} offset:{}", vr(32 + 4 * jn, 4), jn * 1024)
    e("s_waitcnt lgkmcnt(0)")
    e("s_barrier")
    e("s_branch K3_END")
    e.lab("K3_RED")
    e("s_barrier")
    for jn in range(5):
        e("ds_read_b128 {}, v8 offset:{}", vr(64 + 4 * jn, 4), jn * 1024)
    e("v_mul_u32_u24 v9, 1280, v5")
    e("s_mul_i32 s33, s29, 160")
    e("v_add_u32 v9, s33, v9")
    e("v_lshl_add_u32 v9, v4, 3, v9")
    e("s_waitcnt lgkmcnt(0)")
    for r in range(20):
        e("v_fma_f32 {0}, {0}, v7, {1}", vr(32 + r), vr(64 + r))
    for jn in range(5):
        e("v_cvt_pk_bf16_f32 v10, {}, {}", vr(32 + 4 * jn), vr(32 + 4 * jn + 1))
        e("v_cvt_pk_bf16_f32 v11, {}, {}", vr(32 + 4 * jn + 2), vr(32 + 4 * jn + 3))
        e("buffer_store_dwordx2 v[10:11], v9, s[24:27], 0 offen offset:{}", jn * 32)
        e("s_nop 0")
    e.lab("K3_END")
    e("s_endpgm")


HEADER = """; Kernarg layout (80 bytes): A_x@0 A_wqkv@8 A_wo@16 B_x@24 B_wqkv@32 B_wo@40 gate_w@48 out@56 debug@64 ws@72
; @launch kernel=qkv_kernel grid=(256,1,1) block=(512,1,1) lds={k1}
; @launch kernel=attn_kernel grid=(256,1,1) block=(512,1,1) lds={k2}
; @launch kernel=oproj_kernel grid=(256,1,1) block=(512,1,1) lds={k3}
.amdgcn_target "amdgcn-amd-amdhsa--gfx950"
.text
"""


def main():
    e = E()
    gen_k1(e)
    gen_k2(e)
    gen_k3(e)
    out = HEADER.format(k1=K1_LDS, k2=K2_LDS, k3=K3_LDS) + e.text()
    out += '.section .rodata,"a"\n.p2align 6\n'
    out += kd("qkv_kernel", 216).lstrip("\n")
    out += ".p2align 6\n" + kd("attn_kernel", 216).lstrip("\n")
    out += ".p2align 6\n" + kd("oproj_kernel", 136).lstrip("\n")
    path = sys.argv[1] if len(sys.argv) > 1 else "gated_mix__mha_block__sliding_block__prompt.s"
    open(path, "w").write(out)


if __name__ == "__main__":
    main()
```

```python
import sys

WS_KV = 0
WS_K2 = 0x0C00000
WS_Q1 = 0x0D00000
WS_Q2 = 0x1100000
WS_G = 0x1200000
WS_O = 0x1300000
WS_SIZE = 0x1300000 + 2048 * 2560
OOB = 0x7FFFFFF0

QSCALE = (20 ** -0.5) * 1.4426950408889634
TPRIME = 80.0


def f32bits(x):
    import struct
    return struct.unpack("<I", struct.pack("<f", x))[0]


class E:
    def __init__(self):
        self.l = []

    def __call__(self, s, *a):
        self.l.append("    " + (s.format(*a) if a else s))

    def lab(self, s):
        self.l.append(s + ":")

    def raw(self, s):
        self.l.append(s)

    def text(self):
        return "\n".join(self.l) + "\n"


def vr(b, n=1):
    return f"v{b}" if n == 1 else f"v[{b}:{b + n - 1}]"


def sr(b, n=1):
    return f"s{b}" if n == 1 else f"s[{b}:{b + n - 1}]"


def srd(e, d, base, nbytes):
    e("s_mov_b32 {}, {}", sr(d), sr(base))
    e("s_and_b32 {}, {}, 0xffff", sr(d + 1), sr(base + 1))
    e("s_mov_b32 {}, {}", sr(d + 2), hex(nbytes))
    e("s_mov_b32 {}, 0x00020000", sr(d + 3))


def div20(e, dst_q, dst_r, src, tmp):
    e("v_mul_u32_u24 {}, 3277, {}", vr(dst_q), vr(src))
    e("v_lshrrev_b32 {}, 16, {}", vr(dst_q), vr(dst_q))
    e("v_mul_u32_u24 {}, 20, {}", vr(tmp), vr(dst_q))
    e("v_sub_u32 {}, {}, {}", vr(dst_r), vr(src), vr(tmp))


STAMPS = False
WS_ST = 0x2000000
ST_K = [0]
def stamp(e, idx):
    if not STAMPS:
        return
    e("s_memtime s[96:97]")
    e("s_lshl_b32 s98, s2, 3")
    e("s_add_u32 s98, s98, s28")
    e("s_lshl_b32 s98, s98, 6")
    e("s_add_u32 s98, s98, {}", hex(WS_ST + ST_K[0] * 0x40000 + idx * 4))
    e("s_waitcnt lgkmcnt(0)")
    e("v_mov_b32 v250, s96")
    e("v_mov_b32 v251, s98")
    e("buffer_store_dword v250, v251, s[20:23], 0 offen")


def kd(name, vgpr, sgpr=102):
    return f"""
.amdhsa_kernel {name}
  .amdhsa_next_free_vgpr {vgpr}
  .amdhsa_next_free_sgpr {sgpr}
  .amdhsa_accum_offset {vgpr}
  .amdhsa_group_segment_fixed_size 0
  .amdhsa_kernarg_size 80
  .amdhsa_user_sgpr_count 2
  .amdhsa_user_sgpr_kernarg_segment_ptr 1
  .amdhsa_system_sgpr_workgroup_id_x 1
.end_amdhsa_kernel
"""


K1_XROW = 144
K1_WROW = 320
K1_XREG = 256 * K1_XROW
K1_WREG = 64 * K1_WROW
K1_STAGE = K1_XREG + K1_WREG
K1_LDS = 2 * K1_STAGE


def gen_k1(e):
    N = "qkv_kernel"
    e.raw(f".globl {N}\n.p2align 8\n.type {N},@function\n{N}:")
    e("s_cmp_ge_u32 s2, 256")
    e("s_cbranch_scc1 K1_END")
    e("s_load_dwordx4 s[4:7], s[0:1], 0")
    e("s_load_dwordx4 s[8:11], s[0:1], 24")
    e("s_load_dwordx2 s[24:25], s[0:1], 48")
    e("s_load_dwordx2 s[26:27], s[0:1], 72")
    e("v_and_b32 v1, 63, v0")
    e("v_lshrrev_b32 v2, 6, v0")
    e("s_nop 0")
    e("v_readfirstlane_b32 s28, v2")
    e("s_waitcnt lgkmcnt(0)")
    srd(e, 20, 26, 0x3000000 if STAMPS else WS_SIZE)
    e("s_and_b32 s29, s2, 7")
    e("s_lshr_b32 s30, s2, 3")
    e("s_and_b32 s33, s30, 3")
    e("s_lshr_b32 s34, s30, 2")
    e("s_lshr_b32 s35, s29, 1")
    e("s_and_b32 s29, s29, 1")
    e("s_cmp_ge_u32 s35, 2")
    e("s_cselect_b32 s36, 1, 0")
    e("s_cmp_eq_u32 s34, 7")
    e("s_cselect_b32 s37, 1, 0")
    e("s_and_b32 s36, s36, s37")
    e("s_lshl_b32 s38, s29, 2")
    e("s_add_u32 s38, s38, s33")
    e("s_cmp_eq_u32 s36, 1")
    e("s_cbranch_scc0 K1_MAIN")
    e("s_sub_u32 s39, s35, 2")
    e("s_lshl_b32 s39, s39, 3")
    e("s_add_u32 s39, s39, s38")
    e("s_branch K1_GATE")
    e.lab("K1_MAIN")
    e("s_mov_b32 s29, s38")
    e("s_lshl_b32 s30, s35, 3")
    e("s_cmp_eq_u32 s35, 3")
    e("s_cselect_b32 s30, 23, s30")
    e("s_add_u32 s30, s30, s34")
    e("s_cmp_ge_u32 s30, 15")
    e("s_cselect_b32 s31, 1, 0")
    e("s_cselect_b32 s6, s10, s6")
    e("s_cselect_b32 s7, s11, s7")
    e("s_mul_i32 s32, s31, 15")
    e("s_sub_u32 s32, s30, s32")
    srd(e, 12, 4, 2048 * 1280)
    srd(e, 16, 6, 640 * 3840)
    e("v_lshrrev_b32 v3, 3, v0")
    e("v_and_b32 v4, 7, v0")
    e("s_lshl_b32 s33, s29, 8")
    e("v_add_u32 v5, s33, v3")
    e("v_mul_u32_u24 v5, 1280, v5")
    e("v_lshl_add_u32 v200, v4, 4, v5")
    e("v_mul_u32_u24 v5, {}, v3", K1_XROW)
    e("v_lshl_add_u32 v201, v4, 4, v5")
    e("v_add_u32 v202, {}, v201", K1_STAGE)
    e("v_lshrrev_b32 v3, 4, v0")
    e("v_and_b32 v4, 15, v0")
    e("v_mul_u32_u24 v5, 3840, v3")
    e("v_lshl_add_u32 v5, v4, 4, v5")
    e("s_lshl_b32 s33, s32, 8")
    e("v_add_u32 v203, s33, v5")
    e("v_mul_u32_u24 v5, {}, v3", K1_WROW)
    e("v_lshl_add_u32 v5, v4, 4, v5")
    e("v_add_u32 v204, {}, v5", K1_XREG)
    e("v_add_u32 v205, {}, v204", K1_STAGE)
    e("s_and_b32 s34, s28, 3")
    e("s_lshr_b32 s35, s28, 2")
    e("v_and_b32 v3, 31, v1")
    e("v_lshrrev_b32 v4, 5, v1")
    e("s_lshl_b32 s33, s34, 6")
    e("v_add_u32 v5, s33, v3")
    e("v_mul_u32_u24 v5, {}, v5", K1_XROW)
    e("v_lshl_add_u32 v206, v4, 4, v5")
    e("v_add_u32 v207, {}, v206", K1_STAGE)
    e("v_lshrrev_b32 v5, 4, v1")
    e("v_bfe_u32 v6, v1, 2, 2")
    e("v_and_b32 v7, 3, v1")
    e("v_lshrrev_b32 v8, 1, v5")
    e("v_lshl_add_u32 v8, v8, 3, v6")
    e("v_mul_u32_u24 v8, {}, v8", K1_WROW)
    e("v_and_b32 v9, 1, v5")
    e("v_lshl_add_u32 v8, v9, 5, v8")
    e("v_lshl_add_u32 v8, v7, 3, v8")
    e("s_lshl_b32 s33, s35, 7")
    e("s_add_u32 s33, s33, {}", K1_XREG)
    e("v_add_u32 v208, s33, v8")
    e("v_add_u32 v209, {}, v208", K1_STAGE)
    for r in range(64, 128):
        e("v_mov_b32 {}, 0", vr(r))
    STS = [160, 216]

    def gload(st):
        ST = STS[st]
        e("s_lshl_b32 s37, s36, 7")
        for i in range(4):
            if i:
                e("s_add_u32 s37, s37, {}", 64 * 1280)
            e("buffer_load_dwordx4 {}, v200, s[12:15], s37 offen", vr(ST + 4 * i, 4))
        e("s_mul_i32 s37, s36, {}", 64 * 3840)
        e("buffer_load_dwordx4 {}, v203, s[16:19], s37 offen", vr(ST + 16, 4))
        e("s_add_u32 s37, s37, {}", 32 * 3840)
        e("buffer_load_dwordx4 {}, v203, s[16:19], s37 offen", vr(ST + 20, 4))

    def lwrite(stage, st):
        ST = STS[st]
        xa = 201 + stage
        wa = 204 + stage
        for i in range(4):
            e("ds_write_b128 {}, {} offset:{}", vr(xa), vr(ST + 4 * i, 4), i * 64 * K1_XROW)
        for i in range(2):
            e("ds_write_b128 {}, {} offset:{}", vr(wa), vr(ST + 16 + 4 * i, 4), i * 32 * K1_WROW)

    XF = [128, 144]
    def freads(stage, ks, fs):
        xa = 206 + stage
        wa = 208 + stage
        b = XF[fs]
        for i in range(2):
            e("ds_read_b128 {}, {} offset:{}", vr(b + 4 * i, 4), vr(xa), i * 32 * K1_XROW + ks * 32)
        for j in range(2):
            o = ks * 16 * K1_WROW + j * 64
            e("ds_read_b64_tr_b16 {}, {} offset:{}", vr(b + 8 + 4 * j, 2), vr(wa), o)
            e("ds_read_b64_tr_b16 {}, {} offset:{}", vr(b + 8 + 4 * j + 2, 2), vr(wa), o + 4 * K1_WROW)

    def mfmas(fs, vorient):
        b = XF[fs]
        for i in range(2):
            for j in range(2):
                acc = 64 + 16 * (2 * i + j)
                xf = vr(b + 4 * i, 4)
                wf = vr(b + 8 + 4 * j, 4)
                if vorient:
                    e("v_mfma_f32_32x32x16_bf16 {}, {}, {}, {}", vr(acc, 16), xf, wf, vr(acc, 16))
                else:
                    e("v_mfma_f32_32x32x16_bf16 {}, {}, {}, {}", vr(acc, 16), wf, xf, vr(acc, 16))

    def fread_list(stage, ks, fs):
        xa = 206 + stage
        wa = 208 + stage
        b = XF[fs]
        L = []
        for i in range(2):
            L.append("ds_read_b128 {}, {} offset:{}".format(vr(b + 4 * i, 4), vr(xa), i * 32 * K1_XROW + ks * 32))
        for j in range(2):
            o = ks * 16 * K1_WROW + j * 64
            L.append("ds_read_b64_tr_b16 {}, {} offset:{}".format(vr(b + 8 + 4 * j, 2), vr(wa), o))
            L.append("ds_read_b64_tr_b16 {}, {} offset:{}".format(vr(b + 8 + 4 * j + 2, 2), vr(wa), o + 4 * K1_WROW))
        return L

    def lwrite_list(stage, st):
        ST = STS[st]
        xa = 201 + stage
        wa = 204 + stage
        L = []
        for i in range(4):
            L.append("ds_write_b128 {}, {} offset:{}".format(vr(xa), vr(ST + 4 * i, 4), i * 64 * K1_XROW))
        for i in range(2):
            L.append("ds_write_b128 {}, {} offset:{}".format(vr(wa), vr(ST + 16 + 4 * i, 4), i * 32 * K1_WROW))
        return L

    def mfma_list(fs, vorient):
        b = XF[fs]
        L = []
        for i in range(2):
            for j in range(2):
                acc = 64 + 16 * (2 * i + j)
                xf = vr(b + 4 * i, 4)
                wf = vr(b + 8 + 4 * j, 4)
                if vorient:
                    L.append("v_mfma_f32_32x32x16_bf16 {}, {}, {}, {}".format(vr(acc, 16), xf, wf, vr(acc, 16)))
                else:
                    L.append("v_mfma_f32_32x32x16_bf16 {}, {}, {}, {}".format(vr(acc, 16), wf, xf, vr(acc, 16)))
        return L

    def chunk(kc, vorient):
        stage = kc & 1
        more = kc + 1 <= 9
        q = []

        def lds(ins, tag):
            e(ins)
            q.append(tag)

        def need(tag):
            idx = max([i for i, t in enumerate(q) if t == tag], default=-1)
            if idx >= 0:
                n = len(q) - 1 - idx
                e("s_waitcnt lgkmcnt({})", n)
                del q[:idx + 1]

        for ins in fread_list(stage, 0, 0):
            lds(ins, "r0")
        import os
        X = os.environ.get("K1X", "")
        if kc + 2 <= 9 and "g" not in X:
            e("s_mov_b32 s36, {}", kc + 2)
            gload(kc & 1)
        W = lwrite_list(stage ^ 1, (kc + 1) & 1) if (more and "w" not in X) else []
        for ks in range(4):
            need(f"r{ks}")
            M = mfma_list(ks & 1, vorient)
            if "m" in X:
                M = ["s_nop 0"] * 4
            R = fread_list(stage, ks + 1, (ks + 1) & 1) if ks < 3 else []
            side = []
            if ks < 3:
                side += [(x, f"r{ks+1}") for x in R]
            if more and ks == 1:
                side.append(("VM", None))
                side += [(x, "w") for x in W[:3]]
            if more and ks == 2:
                side += [(x, "w") for x in W[3:]]
            per = (len(side) + 3) // 4 if side else 0
            for m in range(4):
                e(M[m])
                for ins, tag in side[m * per:(m + 1) * per]:
                    if ins == "VM":
                        e("s_waitcnt vmcnt({})", 6 if kc + 2 <= 9 else 0)
                    else:
                        lds(ins, tag)
        if more:
            e("s_waitcnt lgkmcnt(0)")
            e("s_barrier")

    ST_K[0] = 1
    stamp(e, 0)
    e("s_mov_b32 s36, 0")
    gload(0)
    e("s_mov_b32 s36, 1")
    gload(1)
    e("s_waitcnt vmcnt(6)")
    lwrite(0, 0)
    e("s_waitcnt lgkmcnt(0)")
    e("s_barrier")
    e("s_cmp_ge_u32 s32, 10")
    e("s_cbranch_scc1 K1_VLOOP")
    for vorient, lab in ((False, "K1_QK"), (True, "K1_V")):
        if vorient:
            e.lab("K1_VLOOP")
        stamp(e, 1)
        for kc in range(10):
            chunk(kc, vorient)
            stamp(e, 2 + kc)
        e("s_nop 15")
        e("s_nop 3")
        if vorient:
            k1_epi_v(e)
        else:
            k1_epi_qk(e)
        stamp(e, 12)
        e("s_waitcnt vmcnt(0)")
        stamp(e, 13)
        e("s_branch K1_END")

    e.lab("K1_GATE")
    srd(e, 12, 4, 2048 * 1280)
    srd(e, 16, 24, 1280)
    e("s_lshl_b32 s29, s39, 7")
    e("s_lshl_b32 s30, s28, 4")
    e("s_add_u32 s29, s29, s30")
    e("v_lshlrev_b32 v3, 2, v1")
    for i in range(5):
        e("buffer_load_dword {}, v3, s[16:19], 0 offen offset:{}", vr(10 + i), i * 256)
    e("s_mul_i32 s30, s29, 1280")
    for r in range(16):
        for i in range(5):
            e("buffer_load_dword {}, v3, s[12:15], s30 offen offset:{}", vr(32 + r * 5 + i), i * 256)
        if r < 15:
            e("s_add_u32 s30, s30, 1280")
    e("s_waitcnt vmcnt(0)")
    for i in range(5):
        e("v_lshlrev_b32 {}, 16, {}", vr(16 + 2 * i), vr(10 + i))
        e("v_and_b32 {}, 0xffff0000, {}", vr(17 + 2 * i), vr(10 + i))
    for r in range(16):
        acc = 112 + r
        for i in range(5):
            x = 32 + r * 5 + i
            e("v_lshlrev_b32 v4, 16, {}", vr(x))
            e("v_and_b32 v5, 0xffff0000, {}", vr(x))
            if i == 0:
                e("v_mul_f32 {}, v4, {}", vr(acc), vr(16))
            else:
                e("v_fmac_f32 {}, v4, {}", vr(acc), vr(16 + 2 * i))
            e("v_fmac_f32 {}, v5, {}", vr(acc), vr(17 + 2 * i))
    for hop, patt in enumerate((0x041F, 0x081F, 0x101F, 0x201F, 0x401F)):
        for r in range(16):
            e("ds_swizzle_b32 {}, {} offset:{}", vr(128 + r), vr(112 + r), hex(patt))
        e("s_waitcnt lgkmcnt(0)")
        for r in range(16):
            e("v_add_f32 {0}, {0}, {1}", vr(112 + r), vr(128 + r))
    for r in range(16):
        e("v_mov_b32 {}, {}", vr(128 + r), vr(112 + r))
    e("s_nop 1")
    for r in range(16):
        e("v_permlane32_swap_b32 {}, {}", vr(112 + r), vr(128 + r))
    for r in range(16):
        e("v_add_f32 {0}, {0}, {1}", vr(112 + r), vr(128 + r))
    e("v_mov_b32 v4, {}", vr(112))
    for r in range(1, 16):
        e("v_cmp_eq_u32 vcc, {}, v1", r)
        e("s_nop 1")
        e("v_cndmask_b32 v4, v4, {}, vcc", vr(112 + r))
    e("v_mul_f32 v4, {}, v4", hex(f32bits(-1.4426950408889634)))
    e("v_exp_f32 v4, v4")
    e("s_nop 0")
    e("v_add_f32 v4, 1.0, v4")
    e("v_rcp_f32 v4, v4")
    e("v_add_u32 v5, s29, v1")
    e("v_lshlrev_b32 v5, 2, v5")
    e("v_add_u32 v5, {}, v5", hex(WS_G))
    e("v_cmp_gt_u32 vcc, 16, v1")
    e("v_mov_b32 v6, {}", hex(OOB))
    e("s_nop 0")
    e("v_cndmask_b32 v5, v6, v5, vcc")
    e("buffer_store_dword v4, v5, s[20:23], 0 offen")
    e.lab("K1_END")
    e("s_endpgm")


def k1_epi_qk(e):
    e("v_and_b32 v3, 31, v1")
    e("v_lshrrev_b32 v4, 5, v1")
    e("s_cmp_lt_u32 s32, 5")
    e("s_cselect_b32 s40, 1, 0")
    e("s_sub_u32 s41, s32, 5")
    e("s_cmp_lt_u32 s32, 5")
    e("s_cselect_b32 s41, s32, s41")
    e("s_movk_i32 s42, 3072")
    e("s_mov_b32 s43, {}", hex(WS_KV))
    e("s_mov_b32 s44, {}", hex(WS_K2))
    e("s_cmp_eq_u32 s40, 1")
    e("s_cbranch_scc0 K1_QKISK")
    e("s_movk_i32 s42, 1024")
    e("s_mov_b32 s43, {}", hex(WS_Q1))
    e("s_mov_b32 s44, {}", hex(WS_Q2))
    e("s_mov_b32 s47, {}", hex(f32bits(QSCALE)))
    for r in range(64, 128):
        e("v_mul_f32 {0}, s47, {0}", vr(r))
    e.lab("K1_QKISK")
    e("s_lshl_b32 s45, s31, 11")
    e("s_lshl_b32 s46, s29, 3")
    e("s_add_u32 s45, s45, s46")
    e("s_lshl_b32 s46, s34, 1")
    e("s_add_u32 s45, s45, s46")
    e("s_lshl_b32 s46, s41, 5")
    e("s_lshl_b32 s47, s35, 4")
    e("s_add_u32 s46, s46, s47")
    e("v_add_u32 v5, s46, v4")
    for j in range(2):
        for g in range(4):
            e("v_add_u32 v6, {}, v5", j * 8 + 2 * g)
            e("v_mul_u32_u24 v7, 13108, v6")
            e("v_lshrrev_b32 v7, 16, v7")
            e("v_mul_u32_u24 v8, 5, v7")
            e("v_sub_u32 v8, v6, v8")
            e("v_lshlrev_b32 v9, 6, v7")
            e("v_add_u32 v9, s45, v9")
            e("v_mul_lo_u32 v10, v9, s42")
            e("v_add_u32 v10, s43, v10")
            e("v_lshrrev_b32 v11, 1, v8")
            e("v_lshl_add_u32 v11, v11, 5, v3")
            e("v_lshl_add_u32 v10, v11, 4, v10")
            e("v_and_b32 v11, 1, v8")
            e("v_lshl_add_u32 v10, v11, 3, v10")
            e("v_lshl_add_u32 v12, v9, 8, s44")
            e("v_lshl_add_u32 v12, v3, 3, v12")
            e("v_cmp_eq_u32 vcc, 4, v8")
            e("v_mov_b32 v13, s42")
            e("v_mov_b32 v14, 256")
            e("v_cndmask_b32 v10, v10, v12, vcc")
            e("v_cndmask_b32 v13, v13, v14, vcc")
            e("v_add_u32 v13, v10, v13")
            for i in range(2):
                acc = 64 + 16 * (2 * i + j) + 4 * g
                e("v_cvt_pk_bf16_f32 v16, {}, {}", vr(acc), vr(acc + 1))
                e("v_cvt_pk_bf16_f32 v17, {}, {}", vr(acc + 2), vr(acc + 3))
                e("buffer_store_dwordx2 v[16:17], {}, s[20:23], 0 offen", vr(10 if i == 0 else 13))
                e("s_nop 0")


def k1_epi_v(e):
    e("v_and_b32 v3, 31, v1")
    e("v_lshrrev_b32 v4, 5, v1")
    e("s_sub_u32 s41, s32, 10")
    e("s_lshl_b32 s46, s41, 7")
    e("s_lshl_b32 s47, s35, 6")
    e("s_add_u32 s46, s46, s47")
    e("s_lshl_b32 s45, s31, 11")
    e("s_lshl_b32 s47, s29, 3")
    e("s_add_u32 s45, s45, s47")
    e("s_lshl_b32 s47, s34, 1")
    e("s_add_u32 s45, s45, s47")
    e("s_movk_i32 s48, 3072")
    e("v_mov_b32 v20, 0x3f803f80")
    e("v_mov_b32 v21, 0x3f803f80")
    e("v_mov_b32 v22, 0x3f803f80")
    e("v_mov_b32 v23, 0x3f803f80")
    for j in range(2):
        e("v_add_u32 v5, s46, v3")
        if j:
            e("v_add_u32 v5, 32, v5")
        div20(e, 7, 8, 5, 9)
        e("v_lshlrev_b32 v9, 6, v7")
        e("v_add_u32 v9, s45, v9")
        e("v_mul_u32_u24 v10, 3072, v9")
        e("v_lshl_add_u32 v11, v4, 5, v8")
        e("v_lshl_add_u32 v10, v11, 4, v10")
        e("v_add_u32 v10, 1024, v10")
        e("v_add_u32 v12, 320, v10")
        e("v_mov_b32 v13, {}", hex(OOB))
        e("v_cmp_eq_u32 vcc, 0, v8")
        e("s_nop 1")
        e("v_cndmask_b32 v12, v13, v12, vcc")
        for i in range(2):
            acc = 64 + 16 * (2 * i + j)
            so = "0" if i == 0 else "s48"
            for half in range(2):
                for q in range(4):
                    e("v_cvt_pk_bf16_f32 {}, {}, {}", vr(16 + q), vr(acc + 8 * half + 2 * q), vr(acc + 8 * half + 2 * q + 1))
                e("buffer_store_dwordx4 v[16:19], v10, s[20:23], {} offen offset:{}", so, half * 1024)
                e("buffer_store_dwordx4 v[20:23], v12, s[20:23], {} offen offset:{}", so, half * 1024)
                e("s_nop 1")


K2_MAIN = 16 * 3072
K2_BUF = K2_MAIN + 4096
K2_LDS = 2 * K2_BUF + 512

S0, S1, PP, PB, CC, OO = 0 + 32, 48, 64, 80, 96, 112
Q1, Q2 = 128, 132
KB = [136, 144]
VB = [152, 160]
STG = 176
NEGINF = 202
CVAL = 203
T0, T1, T2, T3 = 204, 205, 206, 207
AK, AK2 = 208, 209
AKB, AK2B = 210, 211
GV = 212


def blk_softmax(e, cur, nxt, tag, uid, masked=None):
    for r in range(16):
        e("v_exp_f32 {}, {}", vr(PP + r), vr(cur + r))
    for r in range(8):
        e("v_cvt_pk_bf16_f32 {}, {}, {}", vr(PB + r), vr(PP + 2 * r), vr(PP + 2 * r + 1))
    e("v_or3_b32 {}, {}, {}, {}", vr(T0), vr(PB), vr(PB + 1), vr(PB + 2))
    e("v_or3_b32 {}, {}, {}, {}", vr(T1), vr(PB + 3), vr(PB + 4), vr(PB + 5))
    e("v_or3_b32 {}, {}, {}, {}", vr(T0), vr(T0), vr(PB + 6), vr(PB + 7))
    e("v_or_b32 {0}, {0}, {1}", vr(T0), vr(T1))
    e("v_and_b32 {0}, 0x40004000, {0}", vr(T0))
    e("v_cmp_ne_u32 vcc, 0, {}", vr(T0))
    e("s_cbranch_vccnz RARE_{}", uid)
    e.lab(f"BACK_{uid}")


def rare_path(e, cur, nxt, uid, first=False, ret=True):
    e.lab(f"RARE_{uid}")
    e("v_max3_f32 {}, {}, {}, {}", vr(T0), vr(cur), vr(cur + 1), vr(cur + 2))
    e("v_max3_f32 {}, {}, {}, {}", vr(T1), vr(cur + 3), vr(cur + 4), vr(cur + 5))
    for r in range(6, 14, 4):
        e("v_max3_f32 {0}, {0}, {1}, {2}", vr(T0), vr(cur + r), vr(cur + r + 1))
        e("v_max3_f32 {0}, {0}, {1}, {2}", vr(T1), vr(cur + r + 2), vr(cur + r + 3))
    e("v_max3_f32 {0}, {0}, {1}, {2}", vr(T0), vr(cur + 14), vr(cur + 15))
    e("v_max_f32 {0}, {0}, {1}", vr(T0), vr(T1))
    e("v_mov_b32 {}, {}", vr(T1), vr(T0))
    e("s_nop 1")
    e("v_permlane32_swap_b32 {}, {}", vr(T0), vr(T1))
    e("v_max_f32 {0}, {0}, {1}", vr(T0), vr(T1))
    e("v_add_f32 {0}, {1}, {0}", vr(T0), hex(f32bits(TPRIME)))
    if not first:
        e("v_max_f32 {0}, 0, {0}", vr(T0))
    e("v_max_f32 {}, 0, {}", vr(T1), vr(T0))
    e("v_sub_f32 {}, 0, {}", vr(T1), vr(T1))
    e("v_exp_f32 {0}, {0}", vr(T1))
    e("v_sub_f32 {0}, {0}, {1}", vr(CVAL), vr(T0))
    for r in range(16):
        e("v_mov_b32 {}, {}", vr(CC + r), vr(CVAL))
    for r in range(16):
        e("v_mul_f32 {0}, {0}, {1}", vr(OO + r), vr(T1))
    for r in range(16):
        e("v_sub_f32 {0}, {0}, {1}", vr(cur + r), vr(T0))
    if nxt is not None:
        for r in range(16):
            e("v_sub_f32 {0}, {0}, {1}", vr(nxt + r), vr(T0))
    for r in range(16):
        e("v_exp_f32 {}, {}", vr(PP + r), vr(cur + r))
    for r in range(8):
        e("v_cvt_pk_bf16_f32 {}, {}, {}", vr(PB + r), vr(PP + 2 * r), vr(PP + 2 * r + 1))
    e("s_nop 1")
    if ret:
        e("s_branch BACK_{}", uid)


def qk(e, dst, kb):
    e("v_mfma_f32_32x32x16_bf16 {}, {}, {}, {}", vr(dst, 16), vr(kb, 4), vr(Q1, 4), vr(CC, 16))
    e("v_mfma_f32_32x32x16_bf16 {0}, {1}, {2}, {0}", vr(dst, 16), vr(kb + 4, 4), vr(Q2, 4))


def pv(e, vb):
    e("v_mfma_f32_32x32x16_bf16 {0}, {1}, {2}, {0}", vr(OO, 16), vr(vb, 4), vr(PB, 4))
    e("v_mfma_f32_32x32x16_bf16 {0}, {1}, {2}, {0}", vr(OO, 16), vr(vb + 4, 4), vr(PB + 4, 4))


def rd_k(e, kb, a, a2, blk):
    e("ds_read_b128 {}, {} offset:{}", vr(kb, 4), vr(a), blk * 3072)
    e("ds_read_b64 {}, {} offset:{}", vr(kb + 4, 2), vr(a2), blk * 256)


def rd_v(e, vb, a, blk):
    e("ds_read_b128 {}, {} offset:{}", vr(vb, 4), vr(a), blk * 3072 + 1024)
    e("ds_read_b128 {}, {} offset:{}", vr(vb + 4, 4), vr(a), blk * 3072 + 2048)


def attn_epilogue(e, p):
    e("s_nop 15")
    e("v_mov_b32 {}, {}", vr(T0), vr(OO + 8))
    e("v_mov_b32 {}, {}", vr(T1), vr(OO + 8))
    e("s_nop 1")
    e("v_permlane32_swap_b32 {}, {}", vr(T0), vr(T1))
    e("v_rcp_f32 {0}, {0}", vr(T1))
    e("s_nop 0")
    for r in range(12):
        e("v_mul_f32 {0}, {0}, {1}", vr(OO + r), vr(T1))
    for g in range(3):
        e("v_cvt_pk_bf16_f32 {}, {}, {}", vr(T2), vr(OO + 4 * g), vr(OO + 4 * g + 1))
        e("v_cvt_pk_bf16_f32 {}, {}, {}", vr(T3), vr(OO + 4 * g + 2), vr(OO + 4 * g + 3))
        e("buffer_store_dwordx2 {}, {}, s[20:23], 0 offen offset:{}", vr(T2, 2), vr(214 if g == 2 else 213), p * 1280 + g * 16)
        e("s_nop 0")


def gen_k2(e):
    N = "attn_kernel"
    ST_K[0] = 0
    e.raw(f".globl {N}\n.p2align 8\n.type {N},@function\n{N}:")
    e("s_cmp_ge_u32 s2, 256")
    e("s_cbranch_scc1 K2_END")
    e("s_load_dwordx2 s[26:27], s[0:1], 72")
    e("v_and_b32 v1, 63, v0")
    e("v_lshrrev_b32 v2, 6, v0")
    e("s_nop 0")
    e("v_readfirstlane_b32 s28, v2")
    e("s_and_b32 s29, s2, 31")
    e("s_lshr_b32 s30, s2, 5")
    e("s_waitcnt lgkmcnt(0)")
    srd(e, 20, 26, 0x3000000 if STAMPS else WS_SIZE)
    e("v_and_b32 v3, 31, v1")
    e("v_lshrrev_b32 v4, 5, v1")
    e("v_lshlrev_b32 v5, 4, v0")
    e("v_lshlrev_b32 v6, 3, v0")
    e("v_add_u32 v7, {}, v6", K2_MAIN)
    e("s_lshl_b32 s31, s29, 6")
    e("s_lshl_b32 s32, s30, 3")
    e("s_add_u32 s32, s32, s28")
    e("v_lshlrev_b32 v8, 4, v1")
    e("v_lshlrev_b32 v9, 3, v3")
    e("v_mov_b32 v10, {}", hex(OOB))
    e("v_cmp_eq_u32 vcc, 0, v4")
    e("s_nop 1")
    e("v_cndmask_b32 v10, v10, v9, vcc")
    e("v_mov_b32 {}, v8", vr(AK))
    e("v_add_u32 {}, {}, v9", vr(AK2), K2_MAIN)

    def load_q(p):
        e("s_add_u32 s33, s31, s32")
        if p:
            e("s_add_u32 s33, s33, 2048")
        e("s_lshl_b32 s34, s33, 10")
        e("s_add_u32 s34, s34, {}", hex(WS_Q1))
        e("s_lshl_b32 s35, s33, 8")
        e("s_add_u32 s35, s35, {}", hex(WS_Q2))
        e("buffer_load_dwordx4 {}, v8, s[20:23], s34 offen", vr(Q1, 4))
        e("buffer_load_dwordx2 {}, v10, s[20:23], s35 offen", vr(Q2, 2))
        e("v_mov_b32 {}, 0", vr(Q2 + 2))
        e("v_mov_b32 {}, 0", vr(Q2 + 3))

    def stage_load():
        e("s_mul_i32 s37, s36, 3072")
        for i in range(6):
            e("buffer_load_dwordx4 {}, v5, s[20:23], s37 offen", vr(STG + 4 * i, 4))
            if i < 5:
                e("s_add_u32 s37, s37, 8192")
        e("s_lshl_b32 s37, s36, 8")
        e("s_add_u32 s37, s37, {}", hex(WS_K2))
        e("buffer_load_dwordx2 {}, v6, s[20:23], s37 offen", vr(STG + 24, 2))

    def stage_write():
        e("v_add_u32 v11, s38, v5")
        e("v_add_u32 v12, s38, v7")
        for i in range(6):
            e("ds_write_b128 v11, {} offset:{}", vr(STG + 4 * i, 4), i * 8192)
        e("ds_write_b64 v12, {}", vr(STG + 24, 2))

    for kb in KB:
        e("v_mov_b32 {}, 0", vr(kb + 6))
        e("v_mov_b32 {}, 0", vr(kb + 7))
    e("v_mov_b32 {}, 0xff800000", vr(NEGINF))
    e("v_lshlrev_b32 v11, 2, v4")
    for r in range(16):
        e("v_add_u32 v12, {}, v11", (r % 4) + 8 * (r // 4))
        e("v_cmp_le_u32 {}, v12, v3", sr(64 + 2 * r, 2))
    e("s_lshl_b32 s33, s32, 5")
    e("v_add_u32 v11, s33, v3")
    e("v_mul_u32_u24 v11, 2560, v11")
    e("s_mul_i32 s33, s29, 40")
    e("s_add_u32 s33, s33, {}", hex(WS_O))
    e("v_add_u32 v11, s33, v11")
    e("v_lshl_add_u32 v213, v4, 3, v11")
    e("v_mov_b32 v12, {}", hex(OOB - 4096))
    e("v_cmp_eq_u32 vcc, 0, v4")
    e("s_nop 1")
    e("v_cndmask_b32 v214, v12, v213, vcc")

    stamp(e, 0)
    load_q(0)
    e("s_mov_b32 s36, s31")
    stage_load()
    e("s_waitcnt vmcnt(0)")
    e("s_mov_b32 s38, 0")
    stage_write()
    e("s_waitcnt lgkmcnt(0)")
    e("s_barrier")
    for r in range(16):
        e("v_mov_b32 {}, 0", vr(CC + r))
        e("v_mov_b32 {}, 0", vr(OO + r))
    e("v_mov_b32 {}, 0", vr(CVAL))
    e("s_mov_b32 s39, 0")
    stamp(e, 1)
    rare = []
    KQ, VQ = KB[0], VB[0]
    OS, CVS = 216, 232

    def a_block(i, checked, cur, nxt, a, a2, off, last, uid=None, wr=None, vm=False):
        e("s_waitcnt lgkmcnt({})", 2)
        if vm:
            e("s_waitcnt vmcnt(0)")
        if wr:
            e(wr)
        if not last:
            e("v_mfma_f32_32x32x16_bf16 {}, {}, {}, {}", vr(nxt, 16), vr(KQ, 4), vr(Q1, 4), vr(CC, 16))
        for r in range(0, 4):
            e("v_exp_f32 {}, {}", vr(PP + r), vr(cur + r))
        if not last:
            e("v_mfma_f32_32x32x16_bf16 {0}, {1}, {2}, {0}", vr(nxt, 16), vr(KQ + 4, 4), vr(Q2, 4))
            rd_k(e, KQ, a, a2, off + 2)
        for r in range(4, 8):
            e("v_exp_f32 {}, {}", vr(PP + r), vr(cur + r))
        e("s_waitcnt lgkmcnt({})", (1 if wr else 0) if last else (3 if wr else 2))
        e("v_mfma_f32_32x32x16_bf16 {0}, {1}, {2}, {0}", vr(OO, 16), vr(VQ, 4), vr(PB, 4))
        for r in range(8, 12):
            e("v_exp_f32 {}, {}", vr(PP + r), vr(cur + r))
        e("v_mfma_f32_32x32x16_bf16 {0}, {1}, {2}, {0}", vr(OO, 16), vr(VQ + 4, 4), vr(PB + 4, 4))
        rd_v(e, VQ, a, off)
        for r in range(12, 16):
            e("v_exp_f32 {}, {}", vr(PP + r), vr(cur + r))
        for r in range(8):
            e("v_cvt_pk_bf16_f32 {}, {}, {}", vr(PB + r), vr(PP + 2 * r), vr(PP + 2 * r + 1))
        if checked:
            e("v_or3_b32 {}, {}, {}, {}", vr(T0), vr(PB), vr(PB + 1), vr(PB + 2))
            e("v_or3_b32 {}, {}, {}, {}", vr(T1), vr(PB + 3), vr(PB + 4), vr(PB + 5))
            e("v_or3_b32 {}, {}, {}, {}", vr(T0), vr(T0), vr(PB + 6), vr(PB + 7))
            e("v_or_b32 {0}, {0}, {1}", vr(T0), vr(T1))
            e("v_and_b32 {0}, 0x40004000, {0}", vr(T0))
            e("v_cmp_ne_u32 vcc, 0, {}", vr(T0))
            e("s_cbranch_vccnz RARE_{}", uid)
            e.lab(f"BACK_{uid}")
            rare.append((cur, nxt, uid))

    def tile_prologue():
        rd_k(e, KQ, AK, AK2, 0)
        for r in range(8):
            e("v_mov_b32 {}, 0", vr(PB + r))
        e("s_waitcnt lgkmcnt(0)")
        qk(e, S0, KQ)
        rd_k(e, KQ, AK, AK2, 1)
        rd_v(e, VQ, AK, 0)
        e("s_nop 9")

    e.lab("K2_TILE")
    e("s_add_u32 s36, s36, 16")
    e("s_cmp_lt_u32 s39, 3")
    e("s_cbranch_scc1 K2_PF")
    e("s_lshl_b32 s40, s30, 3")
    e("s_max_u32 s40, s40, 8")
    e("s_sub_u32 s40, s40, 8")
    e("s_add_u32 s36, s31, s40")
    e("s_add_u32 s36, s36, 2048")
    e.lab("K2_PF")
    stage_load()
    e("s_cmp_lg_u32 s39, 0")
    e("s_cbranch_scc1 K2_NOINIT")
    rd_k(e, KQ, AK, AK2, 0)
    e("s_waitcnt lgkmcnt(0)")
    qk(e, S0, KQ)
    e("s_nop 15")
    rare_path(e, S0, None, "INIT", first=True, ret=False)
    e.lab("K2_NOINIT")
    for r in range(16):
        e("v_mov_b32 {}, {}", vr(OS + r), vr(OO + r))
    e("v_mov_b32 {}, {}", vr(CVS), vr(CVAL))
    tile_prologue()
    import os
    UNR = int(os.environ.get("K2UNR", "16"))
    if UNR == 16:
        e("s_xor_b32 s33, s38, {}", K2_BUF)
        e("v_add_u32 v11, s33, v5")
        e("v_add_u32 v12, s33, v7")
        for i in range(16):
            cur, nxt = (S0, S1) if i % 2 == 0 else (S1, S0)
            wr = None
            if 9 <= i <= 14:
                wr = "ds_write_b128 v11, {} offset:{}".format(vr(STG + 4 * (i - 9), 4), (i - 9) * 8192)
            if i == 15:
                wr = "ds_write_b64 v12, {}".format(vr(STG + 24, 2))
            a_block(i, False, cur, nxt, AK, AK2, i, i == 15, wr=wr, vm=(i == 9))
    else:
        e("s_mov_b32 s41, 0")
        e("v_mov_b32 v13, {}", vr(AK))
        e("v_mov_b32 v14, {}", vr(AK2))
        e.lab("K2_FBLK")
        for i in range(UNR):
            cur, nxt = (S0, S1) if i % 2 == 0 else (S1, S0)
            a_block(i, False, cur, nxt, 13, 14, i, False)
        e("v_add_u32 v13, {}, v13", UNR * 3072)
        e("v_add_u32 v14, {}, v14", UNR * 256)
        e("s_add_u32 s41, s41, 1")
        e("s_cmp_lt_u32 s41, {}", 16 // UNR)
        e("s_cbranch_scc1 K2_FBLK")
    e("s_waitcnt lgkmcnt(0)")
    pv(e, VQ)
    e("s_nop 15")
    e("v_cmp_ngt_f32 vcc, {}, {}", hex(f32bits(2.0 ** 40)), vr(OO + 8))
    e("s_cbranch_vccnz K2_SLOW")
    e.lab("K2_TILE_DONE")
    if STAMPS:
        e("s_memtime s[96:97]")
        e("s_lshl_b32 s98, s2, 3")
        e("s_add_u32 s98, s98, s28")
        e("s_lshl_b32 s98, s98, 6")
        e("s_lshl_b32 s99, s39, 3")
        e("s_add_u32 s98, s98, s99")
        e("s_add_u32 s98, s98, {}", hex(WS_ST + 2 * 4))
        e("s_waitcnt lgkmcnt(0)")
        e("v_mov_b32 v250, s96")
        e("v_mov_b32 v251, s98")
        e("buffer_store_dword v250, v251, s[20:23], 0 offen")
    e("s_waitcnt vmcnt(0) lgkmcnt(0)")
    e("s_xor_b32 s38, s38, {}", K2_BUF)
    if UNR != 16:
        stage_write()
    e("v_lshlrev_b32 {}, 4, v1", vr(AK))
    e("v_add_u32 {0}, s38, {0}", vr(AK))
    e("v_lshlrev_b32 {}, 3, v3", vr(AK2))
    e("v_add_u32 {0}, s38, {0}", vr(AK2))
    e("v_add_u32 {0}, {1}, {0}", vr(AK2), K2_MAIN)
    e("s_waitcnt lgkmcnt(0)")
    e("s_barrier")
    if STAMPS:
        e("s_memtime s[96:97]")
        e("s_lshl_b32 s98, s2, 3")
        e("s_add_u32 s98, s98, s28")
        e("s_lshl_b32 s98, s98, 6")
        e("s_lshl_b32 s99, s39, 3")
        e("s_add_u32 s98, s98, s99")
        e("s_add_u32 s98, s98, {}", hex(WS_ST + 3 * 4))
        e("s_waitcnt lgkmcnt(0)")
        e("v_mov_b32 v250, s96")
        e("v_mov_b32 v251, s98")
        e("buffer_store_dword v250, v251, s[20:23], 0 offen")
    e("s_add_u32 s39, s39, 1")
    e("s_cmp_lt_u32 s39, 4")
    e("s_cbranch_scc1 K2_TILE")
    attn_epilogue(e, 0)
    stamp(e, 10)

    load_q(1)
    e("s_lshl_b32 s40, s30, 3")
    e("s_max_u32 s40, s40, 8")
    e("s_sub_u32 s40, s40, 8")
    e("s_sub_u32 s42, s32, s40")
    e("s_min_u32 s47, s32, 8")
    e("s_waitcnt vmcnt(0)")

    def b_pass(checked, tag):
        for r in range(16):
            e("v_mov_b32 {}, 0", vr(CC + r))
            e("v_mov_b32 {}, 0", vr(OO + r))
        e("v_mov_b32 {}, 0", vr(CVAL))
        e("s_mul_i32 s43, s42, 3072")
        e("s_lshl_b32 s44, s42, 8")
        e("v_add_u32 v13, s43, {}", vr(AK))
        e("v_add_u32 v14, s44, {}", vr(AK2))
        rd_k(e, KQ, 13, 14, 0)
        rd_v(e, VQ, 13, 0)
        e("s_waitcnt lgkmcnt(2)")
        qk(e, S0, KQ)
        e("s_cmp_eq_u32 s47, 0")
        e("s_cbranch_scc1 K2_B1_{}", tag)
        e("v_subrev_u32 v13, 3072, v13")
        e("v_subrev_u32 v14, 256, v14")
        rd_k(e, KQ, 13, 14, 0)
        e.lab(f"K2_B1_{tag}")
        e("s_nop 15")
        for r in range(16):
            e("v_cndmask_b32 {0}, {1}, {0}, {2}", vr(S0 + r), vr(NEGINF), sr(64 + 2 * r, 2))
        rare_path(e, S0, None, "BINIT" + tag, first=True, ret=False)
        e("s_waitcnt lgkmcnt(0)")
        pv(e, VQ)
        e("s_cmp_eq_u32 s47, 0")
        e("s_cbranch_scc1 K2_BDONE_{}", tag)
        rd_v(e, VQ, 13, 0)
        e("s_mov_b32 s45, 1")
        e.lab(f"K2_BL_{tag}")
        e("s_waitcnt lgkmcnt(2)")
        qk(e, S0, KQ)
        e("s_cmp_eq_u32 s45, s47")
        e("s_cbranch_scc1 K2_BN1_{}", tag)
        e("v_subrev_u32 v13, 3072, v13")
        e("v_subrev_u32 v14, 256, v14")
        rd_k(e, KQ, 13, 14, 0)
        e.lab(f"K2_BN1_{tag}")
        e("s_nop 11")
        e("s_cmp_eq_u32 s45, 8")
        e("s_cbranch_scc0 K2_BNM_{}", tag)
        for r in range(16):
            e("v_cndmask_b32 {0}, {0}, {1}, {2}", vr(S0 + r), vr(NEGINF), sr(64 + 2 * r, 2))
        e.lab(f"K2_BNM_{tag}")
        if checked:
            blk_softmax(e, S0, None, "B", "BM")
            rare.append((S0, None, "BM"))
        else:
            for r in range(16):
                e("v_exp_f32 {}, {}", vr(PP + r), vr(S0 + r))
            for r in range(8):
                e("v_cvt_pk_bf16_f32 {}, {}, {}", vr(PB + r), vr(PP + 2 * r), vr(PP + 2 * r + 1))
        e("s_waitcnt lgkmcnt(0)")
        pv(e, VQ)
        e("s_cmp_eq_u32 s45, s47")
        e("s_cbranch_scc1 K2_BDONE_{}", tag)
        rd_v(e, VQ, 13, 0)
        e("s_add_u32 s45, s45, 1")
        e("s_branch K2_BL_{}", tag)
        e.lab(f"K2_BDONE_{tag}")

    b_pass(False, "F")
    e("s_nop 15")
    e("v_cmp_ngt_f32 vcc, {}, {}", hex(f32bits(2.0 ** 40)), vr(OO + 8))
    e("s_cbranch_vccnz K2_BSLOW")
    e.lab("K2_BFIN")
    attn_epilogue(e, 1)
    stamp(e, 11)
    e.lab("K2_END")
    e("s_endpgm")
    e.lab("K2_BSLOW")
    b_pass(True, "S")
    e("s_branch K2_BFIN")
    e.lab("K2_SLOW")
    for r in range(16):
        e("v_mov_b32 {}, {}", vr(OO + r), vr(OS + r))
        e("v_mov_b32 {}, {}", vr(CC + r), vr(CVS))
    e("v_mov_b32 {}, {}", vr(CVAL), vr(CVS))
    tile_prologue()
    e("s_mov_b32 s41, 0")
    e("v_mov_b32 v13, {}", vr(AK))
    e("v_mov_b32 v14, {}", vr(AK2))
    e.lab("K2_BLK")
    for half in range(2):
        cur, nxt = (S0, S1) if half == 0 else (S1, S0)
        a_block(half, True, cur, nxt, 13, 14, half, False, uid=f"A{half}")
    e("v_add_u32 v13, {}, v13", 2 * 3072)
    e("v_add_u32 v14, {}, v14", 2 * 256)
    e("s_add_u32 s41, s41, 1")
    e("s_cmp_lt_u32 s41, 8")
    e("s_cbranch_scc1 K2_BLK")
    e("s_waitcnt lgkmcnt(0)")
    pv(e, VQ)
    e("s_branch K2_TILE_DONE")
    for cur, nxt, uid in rare:
        rare_path(e, cur, nxt, uid)


K3_XH = 64 * 144
K3_WH = 64 * 160
K3_STAGE = 2 * K3_XH + 2 * K3_WH
K3_LDS = 2 * K3_STAGE


def gen_k3(e):
    N = "oproj_kernel"
    e.raw(f".globl {N}\n.p2align 8\n.type {N},@function\n{N}:")
    e("s_cmp_ge_u32 s2, 256")
    e("s_cbranch_scc1 K3_END")
    e("s_load_dwordx2 s[4:5], s[0:1], 16")
    e("s_load_dwordx2 s[6:7], s[0:1], 40")
    e("s_load_dwordx2 s[8:9], s[0:1], 56")
    e("s_load_dwordx2 s[26:27], s[0:1], 72")
    e("v_and_b32 v1, 63, v0")
    e("v_lshrrev_b32 v2, 6, v0")
    e("s_nop 0")
    e("v_readfirstlane_b32 s28, v2")
    e("s_and_b32 s29, s2, 7")
    e("s_lshr_b32 s30, s2, 3")
    e("s_waitcnt lgkmcnt(0)")
    srd(e, 20, 26, 0x3000000 if STAMPS else WS_SIZE)
    srd(e, 12, 4, 640 * 1280)
    srd(e, 16, 6, 640 * 1280)
    srd(e, 24, 8, 2048 * 1280)
    e("v_lshrrev_b32 v3, 3, v0")
    e("v_and_b32 v4, 7, v0")
    e("s_lshl_b32 s33, s30, 6")
    e("v_add_u32 v5, s33, v3")
    e("v_mul_u32_u24 v5, 2560, v5")
    e("v_lshl_add_u32 v5, v4, 4, v5")
    e("v_add_u32 v120, {}, v5", hex(WS_O))
    e("v_mul_u32_u24 v5, 144, v3")
    e("v_lshl_add_u32 v121, v4, 4, v5")
    e("v_add_u32 v122, {}, v121", K3_STAGE)
    for ab in range(2):
        e("v_add_u32 v5, {}, v0", 512 * ab)
        e("v_mul_u32_u24 v6, 6554, v5")
        e("v_lshrrev_b32 v6, 16, v6")
        e("v_mul_u32_u24 v7, 10, v6")
        e("v_sub_u32 v7, v5, v7")
        e("v_mul_u32_u24 v8, 1280, v6")
        e("v_lshl_add_u32 v8, v7, 4, v8")
        e("s_mul_i32 s33, s29, 160")
        e("v_add_u32 {}, s33, v8", vr(123 + ab))
        e("v_mul_u32_u24 v8, 160, v6")
        e("v_lshl_add_u32 v8, v7, 4, v8")
        e("v_add_u32 {}, {}, v8", vr(125 + 2 * ab), 2 * K3_XH)
        e("v_add_u32 {}, {}, {}", vr(126 + 2 * ab), K3_STAGE, vr(125 + 2 * ab))
    e("v_mov_b32 v9, {}", hex(OOB))
    e("v_cmp_gt_u32 vcc, 128, v0")
    e("s_nop 1")
    e("v_cndmask_b32 v124, v9, v124, vcc")
    e("s_lshr_b32 s34, s28, 2")
    e("s_and_b32 s35, s28, 3")
    e("v_and_b32 v3, 15, v1")
    e("v_lshrrev_b32 v4, 4, v1")
    e("s_lshl_b32 s33, s35, 4")
    e("v_add_u32 v5, s33, v3")
    e("v_mul_u32_u24 v5, 144, v5")
    e("v_lshl_add_u32 v5, v4, 3, v5")
    e("s_mul_i32 s33, s34, {}", K3_XH)
    e("v_add_u32 v130, s33, v5")
    e("v_add_u32 v131, {}, v130", K3_STAGE)
    e("v_bfe_u32 v6, v1, 2, 2")
    e("v_and_b32 v7, 3, v1")
    e("v_lshl_add_u32 v8, v4, 2, v6")
    e("v_mul_u32_u24 v8, 160, v8")
    e("v_lshl_add_u32 v8, v7, 3, v8")
    e("s_mul_i32 s33, s34, {}", K3_WH)
    e("s_add_u32 s33, s33, {}", 2 * K3_XH)
    e("v_add_u32 v132, s33, v8")
    e("v_add_u32 v133, {}, v132", K3_STAGE)
    for r in range(32, 52):
        e("v_mov_b32 {}, 0", vr(r))
    STS = [64, 136]

    def gload(st):
        ST = STS[st]
        e("s_lshl_b32 s37, s36, 7")
        e("buffer_load_dwordx4 {}, v120, s[20:23], s37 offen", vr(ST, 4))
        e("s_add_u32 s37, s37, 1280")
        e("buffer_load_dwordx4 {}, v120, s[20:23], s37 offen", vr(ST + 4, 4))
        e("s_mul_i32 s37, s36, {}", 64 * 1280)
        e("buffer_load_dwordx4 {}, v123, s[12:15], s37 offen", vr(ST + 8, 4))
        e("buffer_load_dwordx4 {}, v124, s[12:15], s37 offen", vr(ST + 12, 4))
        e("buffer_load_dwordx4 {}, v123, s[16:19], s37 offen", vr(ST + 16, 4))
        e("buffer_load_dwordx4 {}, v124, s[16:19], s37 offen", vr(ST + 20, 4))

    def lwrite(stage, st):
        ST = STS[st]
        e("ds_write_b128 {}, {}", vr(121 + stage), vr(ST, 4))
        e("ds_write_b128 {}, {} offset:{}", vr(121 + stage), vr(ST + 4, 4), K3_XH)
        e("ds_write_b128 {}, {}", vr(125 + stage), vr(ST + 8, 4))
        e("ds_write_b128 {}, {} offset:{}", vr(125 + stage), vr(ST + 16, 4), K3_WH)
        e("v_cmp_gt_u32 vcc, 128, v0")
        e("s_and_saveexec_b64 s[40:41], vcc")
        e("s_cbranch_execz K3_SKIPW{}", lwrite.n)
        e("ds_write_b128 {}, {}", vr(127 + stage), vr(ST + 12, 4))
        e("ds_write_b128 {}, {} offset:{}", vr(127 + stage), vr(ST + 20, 4), K3_WH)
        e.lab(f"K3_SKIPW{lwrite.n}")
        e("s_mov_b64 exec, s[40:41]")
        lwrite.n += 1
    lwrite.n = 0

    FR = [8, 88]
    def freads(stage, ks, fs):
        b = FR[fs]
        e("ds_read_b64 {}, {} offset:{}", vr(b, 2), vr(130 + stage), ks * 64)
        e("ds_read_b64 {}, {} offset:{}", vr(b + 2, 2), vr(130 + stage), ks * 64 + 32)
        for jn in range(5):
            o = ks * 32 * 160 + jn * 32
            e("ds_read_b64_tr_b16 {}, {} offset:{}", vr(b + 4 + 4 * jn, 2), vr(132 + stage), o)
            e("ds_read_b64_tr_b16 {}, {} offset:{}", vr(b + 4 + 4 * jn + 2, 2), vr(132 + stage), o + 16 * 160)

    def mf(fs):
        b = FR[fs]
        for jn in range(5):
            e("v_mfma_f32_16x16x32_bf16 {0}, {1}, {2}, {0}", vr(32 + 4 * jn, 4), vr(b + 4 + 4 * jn, 4), vr(b, 4))

    def chunk(kc):
        stage = kc & 1
        more = kc + 1 <= 9
        freads(stage, 0, 0)
        freads(stage, 1, 1)
        if kc + 2 <= 9:
            e("s_mov_b32 s36, {}", kc + 2)
            gload(kc & 1)
        e("s_waitcnt lgkmcnt(12)")
        mf(0)
        if more:
            e("s_waitcnt vmcnt({})", 6 if kc + 2 <= 9 else 0)
            e("v_cmp_gt_u32 vcc, 128, v0")
            lwrite(stage ^ 1, (kc + 1) & 1)
            e("s_waitcnt lgkmcnt(4)")
        else:
            e("s_waitcnt lgkmcnt(0)")
        mf(1)
        if more:
            e("s_waitcnt lgkmcnt(0)")
            e("s_barrier")

    ST_K[0] = 2
    stamp(e, 0)
    e("s_mov_b32 s36, 0")
    gload(0)
    e("s_mov_b32 s36, 1")
    gload(1)
    e("s_waitcnt vmcnt(6)")
    lwrite(0, 0)
    e("s_waitcnt lgkmcnt(0)")
    e("s_barrier")
    stamp(e, 1)
    for kc in range(10):
        chunk(kc)
        stamp(e, 2 + kc)
    e("s_lshl_b32 s33, s30, 6")
    e("s_lshl_b32 s37, s35, 4")
    e("s_add_u32 s33, s33, s37")
    e("v_add_u32 v5, s33, v3")
    e("v_lshlrev_b32 v6, 2, v5")
    e("v_add_u32 v6, {}, v6", hex(WS_G))
    e("buffer_load_dword v7, v6, s[20:23], 0 offen")
    e("s_barrier")
    e("s_waitcnt vmcnt(0)")
    e("s_nop 7")
    e("s_mul_i32 s33, s35, 5120")
    e("v_lshlrev_b32 v8, 4, v1")
    e("v_add_u32 v8, s33, v8")
    e("s_cmp_eq_u32 s34, 0")
    e("s_cbranch_scc1 K3_RED")
    e("v_sub_f32 v7, 1.0, v7")
    for r in range(20):
        e("v_mul_f32 {0}, {0}, v7", vr(32 + r))
    for jn in range(5):
        e("ds_write_b128 v8, {} offset:{}", vr(32 + 4 * jn, 4), jn * 1024)
    e("s_waitcnt lgkmcnt(0)")
    e("s_barrier")
    e("s_branch K3_END")
    e.lab("K3_RED")
    e("s_barrier")
    for jn in range(5):
        e("ds_read_b128 {}, v8 offset:{}", vr(64 + 4 * jn, 4), jn * 1024)
    e("v_mul_u32_u24 v9, 1280, v5")
    e("s_mul_i32 s33, s29, 160")
    e("v_add_u32 v9, s33, v9")
    e("v_lshl_add_u32 v9, v4, 3, v9")
    e("s_waitcnt lgkmcnt(0)")
    for r in range(20):
        e("v_fma_f32 {0}, {0}, v7, {1}", vr(32 + r), vr(64 + r))
    for jn in range(5):
        e("v_cvt_pk_bf16_f32 v10, {}, {}", vr(32 + 4 * jn), vr(32 + 4 * jn + 1))
        e("v_cvt_pk_bf16_f32 v11, {}, {}", vr(32 + 4 * jn + 2), vr(32 + 4 * jn + 3))
        e("buffer_store_dwordx2 v[10:11], v9, s[24:27], 0 offen offset:{}", jn * 32)
        e("s_nop 0")
    e.lab("K3_END")
    e("s_endpgm")


HEADER = """; Kernarg layout (80 bytes): A_x@0 A_wqkv@8 A_wo@16 B_x@24 B_wqkv@32 B_wo@40 gate_w@48 out@56 debug@64 ws@72
; @launch kernel=qkv_kernel grid=(256,1,1) block=(512,1,1) lds={k1}
; @launch kernel=attn_kernel grid=(256,1,1) block=(512,1,1) lds={k2}
; @launch kernel=oproj_kernel grid=(256,1,1) block=(512,1,1) lds={k3}
.amdgcn_target "amdgcn-amd-amdhsa--gfx950"
.text
"""


def main():
    global STAMPS
    STAMPS = "--stamps" in sys.argv
    if STAMPS:
        sys.argv.remove("--stamps")
    e = E()
    gen_k1(e)
    gen_k2(e)
    gen_k3(e)
    out = HEADER.format(k1=K1_LDS, k2=K2_LDS, k3=K3_LDS) + e.text()
    out += '.section .rodata,"a"\n.p2align 6\n'
    out += kd("qkv_kernel", 256).lstrip("\n")
    out += ".p2align 6\n" + kd("attn_kernel", 256 if STAMPS else 236).lstrip("\n")
    out += ".p2align 6\n" + kd("oproj_kernel", 256 if STAMPS else 160).lstrip("\n")
    path = sys.argv[1] if len(sys.argv) > 1 else "gated_mix__mha_block__sliding_block__prompt.s"
    open(path, "w").write(out)


if __name__ == "__main__":
    main()
```

```python
import sys

WS_KV = 0
WS_K2 = 0x0C00000
WS_Q1 = 0x0D00000
WS_Q2 = 0x1100000
WS_G = 0x1200000
WS_O = 0x1300000
WS_SIZE = 0x1300000 + 2048 * 2560
OOB = 0x7FFFFFF0

QSCALE = (20 ** -0.5) * 1.4426950408889634
TPRIME = 80.0


def f32bits(x):
    import struct
    return struct.unpack("<I", struct.pack("<f", x))[0]


class E:
    def __init__(self):
        self.l = []

    def __call__(self, s, *a):
        self.l.append("    " + (s.format(*a) if a else s))

    def lab(self, s):
        self.l.append(s + ":")

    def raw(self, s):
        self.l.append(s)

    def text(self):
        return "\n".join(self.l) + "\n"


def vr(b, n=1):
    return f"v{b}" if n == 1 else f"v[{b}:{b + n - 1}]"


def sr(b, n=1):
    return f"s{b}" if n == 1 else f"s[{b}:{b + n - 1}]"


def srd(e, d, base, nbytes):
    e("s_mov_b32 {}, {}", sr(d), sr(base))
    e("s_and_b32 {}, {}, 0xffff", sr(d + 1), sr(base + 1))
    e("s_mov_b32 {}, {}", sr(d + 2), hex(nbytes))
    e("s_mov_b32 {}, 0x00020000", sr(d + 3))


def div20(e, dst_q, dst_r, src, tmp):
    e("v_mul_u32_u24 {}, 3277, {}", vr(dst_q), vr(src))
    e("v_lshrrev_b32 {}, 16, {}", vr(dst_q), vr(dst_q))
    e("v_mul_u32_u24 {}, 20, {}", vr(tmp), vr(dst_q))
    e("v_sub_u32 {}, {}, {}", vr(dst_r), vr(src), vr(tmp))


STAMPS = False
WS_ST = 0x2000000
ST_K = [0]
def stamp(e, idx):
    if not STAMPS:
        return
    e("s_memtime s[96:97]")
    e("s_lshl_b32 s98, s2, 3")
    e("s_add_u32 s98, s98, s28")
    e("s_lshl_b32 s98, s98, 6")
    e("s_add_u32 s98, s98, {}", hex(WS_ST + ST_K[0] * 0x40000 + idx * 4))
    e("s_waitcnt lgkmcnt(0)")
    e("v_mov_b32 v250, s96")
    e("v_mov_b32 v251, s98")
    e("buffer_store_dword v250, v251, s[20:23], 0 offen")


def kd(name, vgpr, sgpr=102):
    return f"""
.amdhsa_kernel {name}
  .amdhsa_next_free_vgpr {vgpr}
  .amdhsa_next_free_sgpr {sgpr}
  .amdhsa_accum_offset {vgpr}
  .amdhsa_group_segment_fixed_size 0
  .amdhsa_kernarg_size 80
  .amdhsa_user_sgpr_count 2
  .amdhsa_user_sgpr_kernarg_segment_ptr 1
  .amdhsa_system_sgpr_workgroup_id_x 1
.end_amdhsa_kernel
"""


K1_XREG = 256 * 128
K1_WREG = 64 * 256
K1_STAGE = K1_XREG + K1_WREG
K1_LDS = 3 * K1_STAGE


def gen_k1(e):
    N = "qkv_kernel"
    e.raw(f".globl {N}\n.p2align 8\n.type {N},@function\n{N}:")
    e("s_cmp_ge_u32 s2, 256")
    e("s_cbranch_scc1 K1_END")
    e("s_load_dwordx4 s[4:7], s[0:1], 0")
    e("s_load_dwordx4 s[8:11], s[0:1], 24")
    e("s_load_dwordx2 s[24:25], s[0:1], 48")
    e("s_load_dwordx2 s[26:27], s[0:1], 72")
    e("v_and_b32 v1, 63, v0")
    e("v_lshrrev_b32 v2, 6, v0")
    e("s_nop 0")
    e("v_readfirstlane_b32 s28, v2")
    e("s_waitcnt lgkmcnt(0)")
    srd(e, 20, 26, 0x3000000 if STAMPS else WS_SIZE)
    e("s_and_b32 s29, s2, 7")
    e("s_lshr_b32 s30, s2, 3")
    e("s_and_b32 s33, s30, 3")
    e("s_lshr_b32 s34, s30, 2")
    e("s_lshr_b32 s35, s29, 1")
    e("s_and_b32 s29, s29, 1")
    e("s_cmp_ge_u32 s35, 2")
    e("s_cselect_b32 s36, 1, 0")
    e("s_cmp_eq_u32 s34, 7")
    e("s_cselect_b32 s37, 1, 0")
    e("s_and_b32 s36, s36, s37")
    e("s_lshl_b32 s38, s29, 2")
    e("s_add_u32 s38, s38, s33")
    e("s_cmp_eq_u32 s36, 1")
    e("s_cbranch_scc0 K1_MAIN")
    e("s_sub_u32 s39, s35, 2")
    e("s_lshl_b32 s39, s39, 3")
    e("s_add_u32 s39, s39, s38")
    e("s_branch K1_GATE")
    e.lab("K1_MAIN")
    e("s_mov_b32 s29, s38")
    e("s_lshl_b32 s30, s35, 3")
    e("s_cmp_eq_u32 s35, 3")
    e("s_cselect_b32 s30, 23, s30")
    e("s_add_u32 s30, s30, s34")
    e("s_cmp_ge_u32 s30, 15")
    e("s_cselect_b32 s31, 1, 0")
    e("s_cselect_b32 s6, s10, s6")
    e("s_cselect_b32 s7, s11, s7")
    e("s_mul_i32 s32, s31, 15")
    e("s_sub_u32 s32, s30, s32")
    srd(e, 12, 4, 2048 * 1280)
    srd(e, 16, 6, 640 * 3840)
    e("s_and_b32 s34, s28, 3")
    e("s_lshr_b32 s35, s28, 2")
    e("v_lshrrev_b32 v3, 3, v1")
    e("v_and_b32 v4, 7, v1")
    e("v_lshrrev_b32 v5, 4, v1")
    e("s_lshl_b32 s33, s29, 8")
    e("s_lshl_b32 s36, s28, 5")
    e("s_add_u32 s33, s33, s36")
    e("v_add_u32 v6, s33, v3")
    e("v_mul_u32_u24 v6, 1280, v6")
    e("v_xor_b32 v7, v4, v5")
    e("v_lshl_add_u32 v200, v7, 4, v6")
    e("v_xor_b32 v7, 4, v7")
    e("v_lshl_add_u32 v201, v7, 4, v6")
    e("v_and_b32 v4, 15, v1")
    e("v_lshlrev_b32 v6, 2, v5")
    e("v_xor_b32 v4, v4, v6")
    e("s_lshl_b32 s33, s28, 3")
    e("v_add_u32 v6, s33, v5")
    e("v_mul_u32_u24 v6, 3840, v6")
    e("v_lshl_add_u32 v6, v4, 4, v6")
    e("s_lshl_b32 s33, s32, 8")
    e("v_add_u32 v203, s33, v6")
    e("v_and_b32 v3, 31, v1")
    e("v_lshrrev_b32 v4, 5, v1")
    e("v_bfe_u32 v5, v1, 1, 3")
    e("s_lshl_b32 s33, s34, 6")
    e("v_add_u32 v6, s33, v3")
    e("v_lshlrev_b32 v6, 7, v6")
    for ks in range(4):
        e("v_add_u32 v7, {}, v4", 2 * ks)
        e("v_xor_b32 v7, v7, v5")
        e("v_lshl_add_u32 {}, v7, 4, v6", vr(204 + ks))
    e("v_lshrrev_b32 v5, 4, v1")
    e("v_bfe_u32 v6, v1, 2, 2")
    e("v_and_b32 v7, 3, v1")
    e("v_lshrrev_b32 v8, 1, v5")
    e("v_lshl_add_u32 v8, v8, 3, v6")
    e("v_lshlrev_b32 v8, 8, v8")
    e("v_and_b32 v9, 1, v5")
    e("v_lshl_add_u32 v8, v9, 5, v8")
    e("v_lshl_add_u32 v8, v7, 3, v8")
    e("v_add_u32 v8, {}, v8", K1_XREG)
    e("s_lshl_b32 s33, s35, 1")
    for j in range(2):
        e("v_mov_b32 v9, s33")
        if j:
            e("v_add_u32 v9, 1, v9")
        e("v_xor_b32 v9, v9, v6")
        e("v_lshl_add_u32 {}, v9, 6, v8", vr(208 + j))
    for r in range(64, 128):
        e("v_mov_b32 {}, 0", vr(r))
    e("s_lshl_b32 s38, s28, 12")
    e("s_lshl_b32 s39, s28, 11")
    e("s_add_u32 s39, s39, {}", K1_XREG)

    def gload(kc):
        st = (kc % 3) * K1_STAGE
        for i in range(4):
            e("s_add_u32 m0, s38, {}", st + i * 1024)
            e("s_movk_i32 s37, {}", kc * 128 + i * 8 * 1280)
            e("buffer_load_dwordx4 {}, s[12:15], s37 offen lds", vr(200 + (i & 1)))
        for i in range(2):
            e("s_add_u32 m0, s39, {}", st + i * 1024)
            e("s_mov_b32 s37, {}", (kc * 64 + 4 * i) * 3840)
            e("buffer_load_dwordx4 v203, s[16:19], s37 offen lds")

    XF = [128, 144]

    def fread_list(kc, ks, fs):
        st = (kc % 3) * K1_STAGE
        b = XF[fs]
        L = []
        for i in range(2):
            L.append(("X", vr(b + 4 * i, 4), 204 + ks, st + i * 4096))
        for j in range(2):
            o = st + ks * 16 * 256
            L.append(("W", vr(b + 8 + 4 * j, 2), 208 + j, o))
            L.append(("W", vr(b + 8 + 4 * j + 2, 2), 208 + j, o + 4 * 256))
        return L

    def emit_read(t):
        kind, dst, areg, off = t
        hi = off // K1_STAGE
        o = off - hi * K1_STAGE
        a = areg + 8 * hi
        if kind == "X":
            e("ds_read_b128 {}, {} offset:{}", dst, vr(a), o)
        else:
            e("ds_read_b64_tr_b16 {}, {} offset:{}", dst, vr(a), o)

    for st in (1, 2):
        for r in range(6):
            e("v_add_u32 {}, {}, {}", vr(204 + 8 * st + r), st * K1_STAGE, vr(204 + r))

    def mfma_list(fs, vorient):
        b = XF[fs]
        L = []
        for i in range(2):
            for j in range(2):
                acc = 64 + 16 * (2 * i + j)
                xf = vr(b + 4 * i, 4)
                wf = vr(b + 8 + 4 * j, 4)
                if vorient:
                    L.append("v_mfma_f32_32x32x16_bf16 {}, {}, {}, {}".format(vr(acc, 16), xf, wf, vr(acc, 16)))
                else:
                    L.append("v_mfma_f32_32x32x16_bf16 {}, {}, {}, {}".format(vr(acc, 16), wf, xf, vr(acc, 16)))
        return L

    def chunk(kc, vorient):
        more = kc + 1 <= 9
        for t in fread_list(kc, 0, 0):
            emit_read(t)
        if kc + 2 <= 9:
            gload(kc + 2)
        for ks in range(4):
            e("s_waitcnt lgkmcnt(0)")
            M = mfma_list(ks & 1, vorient)
            R = fread_list(kc, ks + 1, (ks + 1) & 1) if ks < 3 else []
            per = 2
            for m in range(4):
                e(M[m])
                for t in R[m * per:(m + 1) * per]:
                    emit_read(t)
        if more:
            e("s_waitcnt vmcnt({})", 6 if kc + 2 <= 9 else 0)
            e("s_barrier")

    ST_K[0] = 1
    stamp(e, 0)
    gload(0)
    gload(1)
    e("s_waitcnt vmcnt(6)")
    e("s_barrier")
    e("s_cmp_ge_u32 s32, 10")
    e("s_cbranch_scc1 K1_VLOOP")
    for vorient, lab in ((False, "K1_QK"), (True, "K1_V")):
        if vorient:
            e.lab("K1_VLOOP")
        stamp(e, 1)
        for kc in range(10):
            chunk(kc, vorient)
            stamp(e, 2 + kc)
        e("s_nop 15")
        e("s_nop 3")
        if vorient:
            k1_epi_v(e)
        else:
            k1_epi_qk(e)
        stamp(e, 12)
        e("s_waitcnt vmcnt(0)")
        stamp(e, 13)
        e("s_branch K1_END")

    e.lab("K1_GATE")
    srd(e, 12, 4, 2048 * 1280)
    srd(e, 16, 24, 1280)
    e("s_lshl_b32 s29, s39, 7")
    e("s_lshl_b32 s30, s28, 4")
    e("s_add_u32 s29, s29, s30")
    e("v_lshlrev_b32 v3, 2, v1")
    for i in range(5):
        e("buffer_load_dword {}, v3, s[16:19], 0 offen offset:{}", vr(10 + i), i * 256)
    e("s_mul_i32 s30, s29, 1280")
    for r in range(16):
        for i in range(5):
            e("buffer_load_dword {}, v3, s[12:15], s30 offen offset:{}", vr(32 + r * 5 + i), i * 256)
        if r < 15:
            e("s_add_u32 s30, s30, 1280")
    e("s_waitcnt vmcnt(0)")
    for i in range(5):
        e("v_lshlrev_b32 {}, 16, {}", vr(16 + 2 * i), vr(10 + i))
        e("v_and_b32 {}, 0xffff0000, {}", vr(17 + 2 * i), vr(10 + i))
    for r in range(16):
        acc = 112 + r
        for i in range(5):
            x = 32 + r * 5 + i
            e("v_lshlrev_b32 v4, 16, {}", vr(x))
            e("v_and_b32 v5, 0xffff0000, {}", vr(x))
            if i == 0:
                e("v_mul_f32 {}, v4, {}", vr(acc), vr(16))
            else:
                e("v_fmac_f32 {}, v4, {}", vr(acc), vr(16 + 2 * i))
            e("v_fmac_f32 {}, v5, {}", vr(acc), vr(17 + 2 * i))
    for hop, patt in enumerate((0x041F, 0x081F, 0x101F, 0x201F, 0x401F)):
        for r in range(16):
            e("ds_swizzle_b32 {}, {} offset:{}", vr(128 + r), vr(112 + r), hex(patt))
        e("s_waitcnt lgkmcnt(0)")
        for r in range(16):
            e("v_add_f32 {0}, {0}, {1}", vr(112 + r), vr(128 + r))
    for r in range(16):
        e("v_mov_b32 {}, {}", vr(128 + r), vr(112 + r))
    e("s_nop 1")
    for r in range(16):
        e("v_permlane32_swap_b32 {}, {}", vr(112 + r), vr(128 + r))
    for r in range(16):
        e("v_add_f32 {0}, {0}, {1}", vr(112 + r), vr(128 + r))
    e("v_mov_b32 v4, {}", vr(112))
    for r in range(1, 16):
        e("v_cmp_eq_u32 vcc, {}, v1", r)
        e("s_nop 1")
        e("v_cndmask_b32 v4, v4, {}, vcc", vr(112 + r))
    e("v_mul_f32 v4, {}, v4", hex(f32bits(-1.4426950408889634)))
    e("v_exp_f32 v4, v4")
    e("s_nop 0")
    e("v_add_f32 v4, 1.0, v4")
    e("v_rcp_f32 v4, v4")
    e("v_add_u32 v5, s29, v1")
    e("v_lshlrev_b32 v5, 2, v5")
    e("v_add_u32 v5, {}, v5", hex(WS_G))
    e("v_cmp_gt_u32 vcc, 16, v1")
    e("v_mov_b32 v6, {}", hex(OOB))
    e("s_nop 0")
    e("v_cndmask_b32 v5, v6, v5, vcc")
    e("buffer_store_dword v4, v5, s[20:23], 0 offen")
    e.lab("K1_END")
    e("s_endpgm")


def k1_epi_qk(e):
    e("v_and_b32 v3, 31, v1")
    e("v_lshrrev_b32 v4, 5, v1")
    e("s_cmp_lt_u32 s32, 5")
    e("s_cselect_b32 s40, 1, 0")
    e("s_sub_u32 s41, s32, 5")
    e("s_cmp_lt_u32 s32, 5")
    e("s_cselect_b32 s41, s32, s41")
    e("s_movk_i32 s42, 3072")
    e("s_mov_b32 s43, {}", hex(WS_KV))
    e("s_mov_b32 s44, {}", hex(WS_K2))
    e("s_cmp_eq_u32 s40, 1")
    e("s_cbranch_scc0 K1_QKISK")
    e("s_movk_i32 s42, 1024")
    e("s_mov_b32 s43, {}", hex(WS_Q1))
    e("s_mov_b32 s44, {}", hex(WS_Q2))
    e("s_mov_b32 s47, {}", hex(f32bits(QSCALE)))
    for r in range(64, 128):
        e("v_mul_f32 {0}, s47, {0}", vr(r))
    e.lab("K1_QKISK")
    e("s_lshl_b32 s45, s31, 11")
    e("s_lshl_b32 s46, s29, 3")
    e("s_add_u32 s45, s45, s46")
    e("s_lshl_b32 s46, s34, 1")
    e("s_add_u32 s45, s45, s46")
    e("s_lshl_b32 s46, s41, 5")
    e("s_lshl_b32 s47, s35, 4")
    e("s_add_u32 s46, s46, s47")
    e("v_add_u32 v5, s46, v4")
    for j in range(2):
        for g in range(4):
            e("v_add_u32 v6, {}, v5", j * 8 + 2 * g)
            e("v_mul_u32_u24 v7, 13108, v6")
            e("v_lshrrev_b32 v7, 16, v7")
            e("v_mul_u32_u24 v8, 5, v7")
            e("v_sub_u32 v8, v6, v8")
            e("v_lshlrev_b32 v9, 6, v7")
            e("v_add_u32 v9, s45, v9")
            e("v_mul_lo_u32 v10, v9, s42")
            e("v_add_u32 v10, s43, v10")
            e("v_lshrrev_b32 v11, 1, v8")
            e("v_lshl_add_u32 v11, v11, 5, v3")
            e("v_lshl_add_u32 v10, v11, 4, v10")
            e("v_and_b32 v11, 1, v8")
            e("v_lshl_add_u32 v10, v11, 3, v10")
            e("v_lshl_add_u32 v12, v9, 8, s44")
            e("v_lshl_add_u32 v12, v3, 3, v12")
            e("v_cmp_eq_u32 vcc, 4, v8")
            e("v_mov_b32 v13, s42")
            e("v_mov_b32 v14, 256")
            e("v_cndmask_b32 v10, v10, v12, vcc")
            e("v_cndmask_b32 v13, v13, v14, vcc")
            e("v_add_u32 v13, v10, v13")
            for i in range(2):
                acc = 64 + 16 * (2 * i + j) + 4 * g
                e("v_cvt_pk_bf16_f32 v16, {}, {}", vr(acc), vr(acc + 1))
                e("v_cvt_pk_bf16_f32 v17, {}, {}", vr(acc + 2), vr(acc + 3))
                e("buffer_store_dwordx2 v[16:17], {}, s[20:23], 0 offen", vr(10 if i == 0 else 13))
                e("s_nop 0")


def k1_epi_v(e):
    e("v_and_b32 v3, 31, v1")
    e("v_lshrrev_b32 v4, 5, v1")
    e("s_sub_u32 s41, s32, 10")
    e("s_lshl_b32 s46, s41, 7")
    e("s_lshl_b32 s47, s35, 6")
    e("s_add_u32 s46, s46, s47")
    e("s_lshl_b32 s45, s31, 11")
    e("s_lshl_b32 s47, s29, 3")
    e("s_add_u32 s45, s45, s47")
    e("s_lshl_b32 s47, s34, 1")
    e("s_add_u32 s45, s45, s47")
    e("s_movk_i32 s48, 3072")
    e("v_mov_b32 v20, 0x3f803f80")
    e("v_mov_b32 v21, 0x3f803f80")
    e("v_mov_b32 v22, 0x3f803f80")
    e("v_mov_b32 v23, 0x3f803f80")
    for j in range(2):
        e("v_add_u32 v5, s46, v3")
        if j:
            e("v_add_u32 v5, 32, v5")
        div20(e, 7, 8, 5, 9)
        e("v_lshlrev_b32 v9, 6, v7")
        e("v_add_u32 v9, s45, v9")
        e("v_mul_u32_u24 v10, 3072, v9")
        e("v_lshl_add_u32 v11, v4, 5, v8")
        e("v_lshl_add_u32 v10, v11, 4, v10")
        e("v_add_u32 v10, 1024, v10")
        e("v_add_u32 v12, 320, v10")
        e("v_mov_b32 v13, {}", hex(OOB))
        e("v_cmp_eq_u32 vcc, 0, v8")
        e("s_nop 1")
        e("v_cndmask_b32 v12, v13, v12, vcc")
        for i in range(2):
            acc = 64 + 16 * (2 * i + j)
            so = "0" if i == 0 else "s48"
            for half in range(2):
                for q in range(4):
                    e("v_cvt_pk_bf16_f32 {}, {}, {}", vr(16 + q), vr(acc + 8 * half + 2 * q), vr(acc + 8 * half + 2 * q + 1))
                e("buffer_store_dwordx4 v[16:19], v10, s[20:23], {} offen offset:{}", so, half * 1024)
                e("buffer_store_dwordx4 v[20:23], v12, s[20:23], {} offen offset:{}", so, half * 1024)
                e("s_nop 1")


K2_MAIN = 16 * 3072
K2_BUF = K2_MAIN + 4096
K2_LDS = 2 * K2_BUF + 512

S0, S1, PP, PB, CC, OO = 0 + 32, 48, 64, 80, 96, 112
Q1, Q2 = 128, 132
KB = [136, 144]
VB = [152, 160]
STG = 176
NEGINF = 202
CVAL = 203
T0, T1, T2, T3 = 204, 205, 206, 207
AK, AK2 = 208, 209
AKB, AK2B = 210, 211
GV = 212


def blk_softmax(e, cur, nxt, tag, uid, masked=None):
    for r in range(16):
        e("v_exp_f32 {}, {}", vr(PP + r), vr(cur + r))
    for r in range(8):
        e("v_cvt_pk_bf16_f32 {}, {}, {}", vr(PB + r), vr(PP + 2 * r), vr(PP + 2 * r + 1))
    e("v_or3_b32 {}, {}, {}, {}", vr(T0), vr(PB), vr(PB + 1), vr(PB + 2))
    e("v_or3_b32 {}, {}, {}, {}", vr(T1), vr(PB + 3), vr(PB + 4), vr(PB + 5))
    e("v_or3_b32 {}, {}, {}, {}", vr(T0), vr(T0), vr(PB + 6), vr(PB + 7))
    e("v_or_b32 {0}, {0}, {1}", vr(T0), vr(T1))
    e("v_and_b32 {0}, 0x40004000, {0}", vr(T0))
    e("v_cmp_ne_u32 vcc, 0, {}", vr(T0))
    e("s_cbranch_vccnz RARE_{}", uid)
    e.lab(f"BACK_{uid}")


def rare_path(e, cur, nxt, uid, first=False, ret=True):
    e.lab(f"RARE_{uid}")
    e("v_max3_f32 {}, {}, {}, {}", vr(T0), vr(cur), vr(cur + 1), vr(cur + 2))
    e("v_max3_f32 {}, {}, {}, {}", vr(T1), vr(cur + 3), vr(cur + 4), vr(cur + 5))
    for r in range(6, 14, 4):
        e("v_max3_f32 {0}, {0}, {1}, {2}", vr(T0), vr(cur + r), vr(cur + r + 1))
        e("v_max3_f32 {0}, {0}, {1}, {2}", vr(T1), vr(cur + r + 2), vr(cur + r + 3))
    e("v_max3_f32 {0}, {0}, {1}, {2}", vr(T0), vr(cur + 14), vr(cur + 15))
    e("v_max_f32 {0}, {0}, {1}", vr(T0), vr(T1))
    e("v_mov_b32 {}, {}", vr(T1), vr(T0))
    e("s_nop 1")
    e("v_permlane32_swap_b32 {}, {}", vr(T0), vr(T1))
    e("v_max_f32 {0}, {0}, {1}", vr(T0), vr(T1))
    e("v_add_f32 {0}, {1}, {0}", vr(T0), hex(f32bits(TPRIME)))
    if not first:
        e("v_max_f32 {0}, 0, {0}", vr(T0))
    e("v_max_f32 {}, 0, {}", vr(T1), vr(T0))
    e("v_sub_f32 {}, 0, {}", vr(T1), vr(T1))
    e("v_exp_f32 {0}, {0}", vr(T1))
    e("v_sub_f32 {0}, {0}, {1}", vr(CVAL), vr(T0))
    for r in range(16):
        e("v_mov_b32 {}, {}", vr(CC + r), vr(CVAL))
    for r in range(16):
        e("v_mul_f32 {0}, {0}, {1}", vr(OO + r), vr(T1))
    for r in range(16):
        e("v_sub_f32 {0}, {0}, {1}", vr(cur + r), vr(T0))
    if nxt is not None:
        for r in range(16):
            e("v_sub_f32 {0}, {0}, {1}", vr(nxt + r), vr(T0))
    for r in range(16):
        e("v_exp_f32 {}, {}", vr(PP + r), vr(cur + r))
    for r in range(8):
        e("v_cvt_pk_bf16_f32 {}, {}, {}", vr(PB + r), vr(PP + 2 * r), vr(PP + 2 * r + 1))
    e("s_nop 1")
    if ret:
        e("s_branch BACK_{}", uid)


def qk(e, dst, kb):
    e("v_mfma_f32_32x32x16_bf16 {}, {}, {}, {}", vr(dst, 16), vr(kb, 4), vr(Q1, 4), vr(CC, 16))
    e("v_mfma_f32_32x32x16_bf16 {0}, {1}, {2}, {0}", vr(dst, 16), vr(kb + 4, 4), vr(Q2, 4))


def pv(e, vb):
    e("v_mfma_f32_32x32x16_bf16 {0}, {1}, {2}, {0}", vr(OO, 16), vr(vb, 4), vr(PB, 4))
    e("v_mfma_f32_32x32x16_bf16 {0}, {1}, {2}, {0}", vr(OO, 16), vr(vb + 4, 4), vr(PB + 4, 4))


def rd_k(e, kb, a, a2, blk):
    e("ds_read_b128 {}, {} offset:{}", vr(kb, 4), vr(a), blk * 3072)
    e("ds_read_b64 {}, {} offset:{}", vr(kb + 4, 2), vr(a2), blk * 256)


def rd_v(e, vb, a, blk):
    e("ds_read_b128 {}, {} offset:{}", vr(vb, 4), vr(a), blk * 3072 + 1024)
    e("ds_read_b128 {}, {} offset:{}", vr(vb + 4, 4), vr(a), blk * 3072 + 2048)


def attn_epilogue(e, p):
    e("s_nop 15")
    e("v_mov_b32 {}, {}", vr(T0), vr(OO + 8))
    e("v_mov_b32 {}, {}", vr(T1), vr(OO + 8))
    e("s_nop 1")
    e("v_permlane32_swap_b32 {}, {}", vr(T0), vr(T1))
    e("v_rcp_f32 {0}, {0}", vr(T1))
    e("s_nop 0")
    for r in range(12):
        e("v_mul_f32 {0}, {0}, {1}", vr(OO + r), vr(T1))
    for g in range(3):
        e("v_cvt_pk_bf16_f32 {}, {}, {}", vr(T2), vr(OO + 4 * g), vr(OO + 4 * g + 1))
        e("v_cvt_pk_bf16_f32 {}, {}, {}", vr(T3), vr(OO + 4 * g + 2), vr(OO + 4 * g + 3))
        e("buffer_store_dwordx2 {}, {}, s[20:23], 0 offen offset:{}", vr(T2, 2), vr(214 if g == 2 else 213), p * 1280 + g * 16)
        e("s_nop 0")


def gen_k2(e):
    N = "attn_kernel"
    ST_K[0] = 0
    e.raw(f".globl {N}\n.p2align 8\n.type {N},@function\n{N}:")
    e("s_cmp_ge_u32 s2, 256")
    e("s_cbranch_scc1 K2_END")
    e("s_load_dwordx2 s[26:27], s[0:1], 72")
    e("v_and_b32 v1, 63, v0")
    e("v_lshrrev_b32 v2, 6, v0")
    e("s_nop 0")
    e("v_readfirstlane_b32 s28, v2")
    e("s_and_b32 s29, s2, 31")
    e("s_lshr_b32 s30, s2, 5")
    e("s_waitcnt lgkmcnt(0)")
    srd(e, 20, 26, 0x3000000 if STAMPS else WS_SIZE)
    e("v_and_b32 v3, 31, v1")
    e("v_lshrrev_b32 v4, 5, v1")
    e("v_lshlrev_b32 v5, 4, v0")
    e("v_lshlrev_b32 v6, 3, v0")
    e("v_add_u32 v7, {}, v6", K2_MAIN)
    e("s_lshl_b32 s31, s29, 6")
    e("s_lshl_b32 s32, s30, 3")
    e("s_add_u32 s32, s32, s28")
    e("v_lshlrev_b32 v8, 4, v1")
    e("v_lshlrev_b32 v9, 3, v3")
    e("v_mov_b32 v10, {}", hex(OOB))
    e("v_cmp_eq_u32 vcc, 0, v4")
    e("s_nop 1")
    e("v_cndmask_b32 v10, v10, v9, vcc")
    e("v_mov_b32 {}, v8", vr(AK))
    e("v_add_u32 {}, {}, v9", vr(AK2), K2_MAIN)

    def load_q(p):
        e("s_add_u32 s33, s31, s32")
        if p:
            e("s_add_u32 s33, s33, 2048")
        e("s_lshl_b32 s34, s33, 10")
        e("s_add_u32 s34, s34, {}", hex(WS_Q1))
        e("s_lshl_b32 s35, s33, 8")
        e("s_add_u32 s35, s35, {}", hex(WS_Q2))
        e("buffer_load_dwordx4 {}, v8, s[20:23], s34 offen", vr(Q1, 4))
        e("buffer_load_dwordx2 {}, v10, s[20:23], s35 offen", vr(Q2, 2))
        e("v_mov_b32 {}, 0", vr(Q2 + 2))
        e("v_mov_b32 {}, 0", vr(Q2 + 3))

    def stage_load():
        e("s_mul_i32 s37, s36, 3072")
        for i in range(6):
            e("buffer_load_dwordx4 {}, v5, s[20:23], s37 offen", vr(STG + 4 * i, 4))
            if i < 5:
                e("s_add_u32 s37, s37, 8192")
        e("s_lshl_b32 s37, s36, 8")
        e("s_add_u32 s37, s37, {}", hex(WS_K2))
        e("buffer_load_dwordx2 {}, v6, s[20:23], s37 offen", vr(STG + 24, 2))

    def stage_write():
        e("v_add_u32 v11, s38, v5")
        e("v_add_u32 v12, s38, v7")
        for i in range(6):
            e("ds_write_b128 v11, {} offset:{}", vr(STG + 4 * i, 4), i * 8192)
        e("ds_write_b64 v12, {}", vr(STG + 24, 2))

    for kb in KB:
        e("v_mov_b32 {}, 0", vr(kb + 6))
        e("v_mov_b32 {}, 0", vr(kb + 7))
    e("v_mov_b32 {}, 0xff800000", vr(NEGINF))
    e("v_lshlrev_b32 v11, 2, v4")
    for r in range(16):
        e("v_add_u32 v12, {}, v11", (r % 4) + 8 * (r // 4))
        e("v_cmp_le_u32 {}, v12, v3", sr(64 + 2 * r, 2))
    e("s_lshl_b32 s33, s32, 5")
    e("v_add_u32 v11, s33, v3")
    e("v_mul_u32_u24 v11, 2560, v11")
    e("s_mul_i32 s33, s29, 40")
    e("s_add_u32 s33, s33, {}", hex(WS_O))
    e("v_add_u32 v11, s33, v11")
    e("v_lshl_add_u32 v213, v4, 3, v11")
    e("v_mov_b32 v12, {}", hex(OOB - 4096))
    e("v_cmp_eq_u32 vcc, 0, v4")
    e("s_nop 1")
    e("v_cndmask_b32 v214, v12, v213, vcc")

    stamp(e, 0)
    load_q(0)
    e("s_mov_b32 s36, s31")
    stage_load()
    e("s_waitcnt vmcnt(0)")
    e("s_mov_b32 s38, 0")
    stage_write()
    e("s_waitcnt lgkmcnt(0)")
    e("s_barrier")
    for r in range(16):
        e("v_mov_b32 {}, 0", vr(CC + r))
        e("v_mov_b32 {}, 0", vr(OO + r))
    e("v_mov_b32 {}, 0", vr(CVAL))
    e("s_mov_b32 s39, 0")
    stamp(e, 1)
    rare = []
    KQ, VQ = KB[0], VB[0]
    OS, CVS = 216, 232

    def a_block(i, checked, cur, nxt, a, a2, off, last, uid=None, wr=None, vm=False):
        e("s_waitcnt lgkmcnt({})", 2)
        if vm:
            e("s_waitcnt vmcnt(0)")
        if wr:
            e(wr)
        if not last:
            e("v_mfma_f32_32x32x16_bf16 {}, {}, {}, {}", vr(nxt, 16), vr(KQ, 4), vr(Q1, 4), vr(CC, 16))
        for r in range(0, 4):
            e("v_exp_f32 {}, {}", vr(PP + r), vr(cur + r))
        if not last:
            e("v_mfma_f32_32x32x16_bf16 {0}, {1}, {2}, {0}", vr(nxt, 16), vr(KQ + 4, 4), vr(Q2, 4))
            rd_k(e, KQ, a, a2, off + 2)
        for r in range(4, 8):
            e("v_exp_f32 {}, {}", vr(PP + r), vr(cur + r))
        e("s_waitcnt lgkmcnt({})", (1 if wr else 0) if last else (3 if wr else 2))
        e("v_mfma_f32_32x32x16_bf16 {0}, {1}, {2}, {0}", vr(OO, 16), vr(VQ, 4), vr(PB, 4))
        for r in range(8, 12):
            e("v_exp_f32 {}, {}", vr(PP + r), vr(cur + r))
        e("v_mfma_f32_32x32x16_bf16 {0}, {1}, {2}, {0}", vr(OO, 16), vr(VQ + 4, 4), vr(PB + 4, 4))
        rd_v(e, VQ, a, off)
        for r in range(12, 16):
            e("v_exp_f32 {}, {}", vr(PP + r), vr(cur + r))
        for r in range(8):
            e("v_cvt_pk_bf16_f32 {}, {}, {}", vr(PB + r), vr(PP + 2 * r), vr(PP + 2 * r + 1))
        if checked:
            e("v_or3_b32 {}, {}, {}, {}", vr(T0), vr(PB), vr(PB + 1), vr(PB + 2))
            e("v_or3_b32 {}, {}, {}, {}", vr(T1), vr(PB + 3), vr(PB + 4), vr(PB + 5))
            e("v_or3_b32 {}, {}, {}, {}", vr(T0), vr(T0), vr(PB + 6), vr(PB + 7))
            e("v_or_b32 {0}, {0}, {1}", vr(T0), vr(T1))
            e("v_and_b32 {0}, 0x40004000, {0}", vr(T0))
            e("v_cmp_ne_u32 vcc, 0, {}", vr(T0))
            e("s_cbranch_vccnz RARE_{}", uid)
            e.lab(f"BACK_{uid}")
            rare.append((cur, nxt, uid))

    def tile_prologue():
        rd_k(e, KQ, AK, AK2, 0)
        for r in range(8):
            e("v_mov_b32 {}, 0", vr(PB + r))
        e("s_waitcnt lgkmcnt(0)")
        qk(e, S0, KQ)
        rd_k(e, KQ, AK, AK2, 1)
        rd_v(e, VQ, AK, 0)
        e("s_nop 9")

    e.lab("K2_TILE")
    e("s_add_u32 s36, s36, 16")
    e("s_cmp_lt_u32 s39, 3")
    e("s_cbranch_scc1 K2_PF")
    e("s_lshl_b32 s40, s30, 3")
    e("s_max_u32 s40, s40, 8")
    e("s_sub_u32 s40, s40, 8")
    e("s_add_u32 s36, s31, s40")
    e("s_add_u32 s36, s36, 2048")
    e.lab("K2_PF")
    stage_load()
    e("s_cmp_lg_u32 s39, 0")
    e("s_cbranch_scc1 K2_NOINIT")
    rd_k(e, KQ, AK, AK2, 0)
    e("s_waitcnt lgkmcnt(0)")
    qk(e, S0, KQ)
    e("s_nop 15")
    rare_path(e, S0, None, "INIT", first=True, ret=False)
    e.lab("K2_NOINIT")
    for r in range(16):
        e("v_mov_b32 {}, {}", vr(OS + r), vr(OO + r))
    e("v_mov_b32 {}, {}", vr(CVS), vr(CVAL))
    tile_prologue()
    import os
    UNR = int(os.environ.get("K2UNR", "16"))
    if UNR == 16:
        e("s_xor_b32 s33, s38, {}", K2_BUF)
        e("v_add_u32 v11, s33, v5")
        e("v_add_u32 v12, s33, v7")
        for i in range(16):
            cur, nxt = (S0, S1) if i % 2 == 0 else (S1, S0)
            wr = None
            if 9 <= i <= 14:
                wr = "ds_write_b128 v11, {} offset:{}".format(vr(STG + 4 * (i - 9), 4), (i - 9) * 8192)
            if i == 15:
                wr = "ds_write_b64 v12, {}".format(vr(STG + 24, 2))
            a_block(i, False, cur, nxt, AK, AK2, i, i == 15, wr=wr, vm=(i == 9))
    else:
        e("s_mov_b32 s41, 0")
        e("v_mov_b32 v13, {}", vr(AK))
        e("v_mov_b32 v14, {}", vr(AK2))
        e.lab("K2_FBLK")
        for i in range(UNR):
            cur, nxt = (S0, S1) if i % 2 == 0 else (S1, S0)
            a_block(i, False, cur, nxt, 13, 14, i, False)
        e("v_add_u32 v13, {}, v13", UNR * 3072)
        e("v_add_u32 v14, {}, v14", UNR * 256)
        e("s_add_u32 s41, s41, 1")
        e("s_cmp_lt_u32 s41, {}", 16 // UNR)
        e("s_cbranch_scc1 K2_FBLK")
    e("s_waitcnt lgkmcnt(0)")
    pv(e, VQ)
    e("s_nop 15")
    e("v_cmp_ngt_f32 vcc, {}, {}", hex(f32bits(2.0 ** 40)), vr(OO + 8))
    e("s_cbranch_vccnz K2_SLOW")
    e.lab("K2_TILE_DONE")
    if STAMPS:
        e("s_memtime s[96:97]")
        e("s_lshl_b32 s98, s2, 3")
        e("s_add_u32 s98, s98, s28")
        e("s_lshl_b32 s98, s98, 6")
        e("s_lshl_b32 s99, s39, 3")
        e("s_add_u32 s98, s98, s99")
        e("s_add_u32 s98, s98, {}", hex(WS_ST + 2 * 4))
        e("s_waitcnt lgkmcnt(0)")
        e("v_mov_b32 v250, s96")
        e("v_mov_b32 v251, s98")
        e("buffer_store_dword v250, v251, s[20:23], 0 offen")
    e("s_waitcnt vmcnt(0) lgkmcnt(0)")
    e("s_xor_b32 s38, s38, {}", K2_BUF)
    if UNR != 16:
        stage_write()
    e("v_lshlrev_b32 {}, 4, v1", vr(AK))
    e("v_add_u32 {0}, s38, {0}", vr(AK))
    e("v_lshlrev_b32 {}, 3, v3", vr(AK2))
    e("v_add_u32 {0}, s38, {0}", vr(AK2))
    e("v_add_u32 {0}, {1}, {0}", vr(AK2), K2_MAIN)
    e("s_waitcnt lgkmcnt(0)")
    e("s_barrier")
    if STAMPS:
        e("s_memtime s[96:97]")
        e("s_lshl_b32 s98, s2, 3")
        e("s_add_u32 s98, s98, s28")
        e("s_lshl_b32 s98, s98, 6")
        e("s_lshl_b32 s99, s39, 3")
        e("s_add_u32 s98, s98, s99")
        e("s_add_u32 s98, s98, {}", hex(WS_ST + 3 * 4))
        e("s_waitcnt lgkmcnt(0)")
        e("v_mov_b32 v250, s96")
        e("v_mov_b32 v251, s98")
        e("buffer_store_dword v250, v251, s[20:23], 0 offen")
    e("s_add_u32 s39, s39, 1")
    e("s_cmp_lt_u32 s39, 4")
    e("s_cbranch_scc1 K2_TILE")
    attn_epilogue(e, 0)
    stamp(e, 10)

    load_q(1)
    e("s_lshl_b32 s40, s30, 3")
    e("s_max_u32 s40, s40, 8")
    e("s_sub_u32 s40, s40, 8")
    e("s_sub_u32 s42, s32, s40")
    e("s_min_u32 s47, s32, 8")
    e("s_waitcnt vmcnt(0)")

    def b_pass(checked, tag):
        for r in range(16):
            e("v_mov_b32 {}, 0", vr(CC + r))
            e("v_mov_b32 {}, 0", vr(OO + r))
        e("v_mov_b32 {}, 0", vr(CVAL))
        e("s_mul_i32 s43, s42, 3072")
        e("s_lshl_b32 s44, s42, 8")
        e("v_add_u32 v13, s43, {}", vr(AK))
        e("v_add_u32 v14, s44, {}", vr(AK2))
        rd_k(e, KQ, 13, 14, 0)
        rd_v(e, VQ, 13, 0)
        e("s_waitcnt lgkmcnt(2)")
        qk(e, S0, KQ)
        e("s_cmp_eq_u32 s47, 0")
        e("s_cbranch_scc1 K2_B1_{}", tag)
        e("v_subrev_u32 v13, 3072, v13")
        e("v_subrev_u32 v14, 256, v14")
        rd_k(e, KQ, 13, 14, 0)
        e.lab(f"K2_B1_{tag}")
        e("s_nop 15")
        for r in range(16):
            e("v_cndmask_b32 {0}, {1}, {0}, {2}", vr(S0 + r), vr(NEGINF), sr(64 + 2 * r, 2))
        rare_path(e, S0, None, "BINIT" + tag, first=True, ret=False)
        e("s_waitcnt lgkmcnt(0)")
        pv(e, VQ)
        e("s_cmp_eq_u32 s47, 0")
        e("s_cbranch_scc1 K2_BDONE_{}", tag)
        rd_v(e, VQ, 13, 0)
        e("s_mov_b32 s45, 1")
        e.lab(f"K2_BL_{tag}")
        e("s_waitcnt lgkmcnt(2)")
        qk(e, S0, KQ)
        e("s_cmp_eq_u32 s45, s47")
        e("s_cbranch_scc1 K2_BN1_{}", tag)
        e("v_subrev_u32 v13, 3072, v13")
        e("v_subrev_u32 v14, 256, v14")
        rd_k(e, KQ, 13, 14, 0)
        e.lab(f"K2_BN1_{tag}")
        e("s_nop 11")
        e("s_cmp_eq_u32 s45, 8")
        e("s_cbranch_scc0 K2_BNM_{}", tag)
        for r in range(16):
            e("v_cndmask_b32 {0}, {0}, {1}, {2}", vr(S0 + r), vr(NEGINF), sr(64 + 2 * r, 2))
        e.lab(f"K2_BNM_{tag}")
        if checked:
            blk_softmax(e, S0, None, "B", "BM")
            rare.append((S0, None, "BM"))
        else:
            for r in range(16):
                e("v_exp_f32 {}, {}", vr(PP + r), vr(S0 + r))
            for r in range(8):
                e("v_cvt_pk_bf16_f32 {}, {}, {}", vr(PB + r), vr(PP + 2 * r), vr(PP + 2 * r + 1))
        e("s_waitcnt lgkmcnt(0)")
        pv(e, VQ)
        e("s_cmp_eq_u32 s45, s47")
        e("s_cbranch_scc1 K2_BDONE_{}", tag)
        rd_v(e, VQ, 13, 0)
        e("s_add_u32 s45, s45, 1")
        e("s_branch K2_BL_{}", tag)
        e.lab(f"K2_BDONE_{tag}")

    b_pass(False, "F")
    e("s_nop 15")
    e("v_cmp_ngt_f32 vcc, {}, {}", hex(f32bits(2.0 ** 40)), vr(OO + 8))
    e("s_cbranch_vccnz K2_BSLOW")
    e.lab("K2_BFIN")
    attn_epilogue(e, 1)
    stamp(e, 11)
    e.lab("K2_END")
    e("s_endpgm")
    e.lab("K2_BSLOW")
    b_pass(True, "S")
    e("s_branch K2_BFIN")
    e.lab("K2_SLOW")
    for r in range(16):
        e("v_mov_b32 {}, {}", vr(OO + r), vr(OS + r))
        e("v_mov_b32 {}, {}", vr(CC + r), vr(CVS))
    e("v_mov_b32 {}, {}", vr(CVAL), vr(CVS))
    tile_prologue()
    e("s_mov_b32 s41, 0")
    e("v_mov_b32 v13, {}", vr(AK))
    e("v_mov_b32 v14, {}", vr(AK2))
    e.lab("K2_BLK")
    for half in range(2):
        cur, nxt = (S0, S1) if half == 0 else (S1, S0)
        a_block(half, True, cur, nxt, 13, 14, half, False, uid=f"A{half}")
    e("v_add_u32 v13, {}, v13", 2 * 3072)
    e("v_add_u32 v14, {}, v14", 2 * 256)
    e("s_add_u32 s41, s41, 1")
    e("s_cmp_lt_u32 s41, 8")
    e("s_cbranch_scc1 K2_BLK")
    e("s_waitcnt lgkmcnt(0)")
    pv(e, VQ)
    e("s_branch K2_TILE_DONE")
    for cur, nxt, uid in rare:
        rare_path(e, cur, nxt, uid)


K3_XH = 64 * 128
K3_WH = 64 * 160
K3_WOFF = 2 * K3_XH
K3_SCR = K3_WOFF + 2 * K3_WH
K3_STAGE = K3_SCR + 1024
K3_LDS = 4 * K3_STAGE


def gen_k3(e):
    N = "oproj_kernel"
    e.raw(f".globl {N}\n.p2align 8\n.type {N},@function\n{N}:")
    e("s_cmp_ge_u32 s2, 256")
    e("s_cbranch_scc1 K3_END")
    e("s_load_dwordx2 s[4:5], s[0:1], 16")
    e("s_load_dwordx2 s[6:7], s[0:1], 40")
    e("s_load_dwordx2 s[8:9], s[0:1], 56")
    e("s_load_dwordx2 s[26:27], s[0:1], 72")
    e("v_and_b32 v1, 63, v0")
    e("v_lshrrev_b32 v2, 6, v0")
    e("s_nop 0")
    e("v_readfirstlane_b32 s28, v2")
    e("s_and_b32 s30, s2, 7")
    e("s_lshr_b32 s29, s2, 3")
    e("s_lshr_b32 s33, s29, 3")
    e("s_and_b32 s29, s29, 7")
    e("s_lshl_b32 s33, s33, 3")
    e("s_add_u32 s30, s30, s33")
    e("s_waitcnt lgkmcnt(0)")
    srd(e, 20, 26, 0x3000000 if STAMPS else WS_SIZE)
    srd(e, 12, 4, 640 * 1280)
    srd(e, 16, 6, 640 * 1280)
    srd(e, 24, 8, 2048 * 1280)
    e("v_lshrrev_b32 v3, 3, v1")
    e("v_and_b32 v4, 7, v1")
    e("v_lshrrev_b32 v5, 4, v1")
    e("s_and_b32 s33, s28, 1")
    e("s_lshl_b32 s33, s33, 2")
    e("v_xor_b32 v5, s33, v5")
    e("v_xor_b32 v4, v4, v5")
    e("s_lshl_b32 s33, s30, 6")
    e("s_lshl_b32 s34, s28, 3")
    e("s_add_u32 s33, s33, s34")
    e("v_add_u32 v6, s33, v3")
    e("v_mul_u32_u24 v6, 2560, v6")
    e("v_lshl_add_u32 v6, v4, 4, v6")
    e("v_add_u32 v120, {}, v6", hex(WS_O))
    for t in range(3):
        e("s_add_u32 s33, s28, {}", 8 * t)
        e("s_cmp_ge_u32 s33, 10")
        e("s_cselect_b32 s34, 1, 0")
        e("s_mul_i32 s35, s34, 10")
        e("s_sub_u32 s35, s33, s35")
        e("s_lshl_b32 s36, s35, 6")
        e("v_add_u32 v5, s36, v1")
        e("v_mul_u32_u24 v6, 6554, v5")
        e("v_lshrrev_b32 v6, 16, v6")
        e("v_mul_u32_u24 v7, 10, v6")
        e("v_sub_u32 v7, v5, v7")
        e("v_mul_u32_u24 v8, 1280, v6")
        e("v_lshl_add_u32 v8, v7, 4, v8")
        e("s_mul_i32 s37, s29, 160")
        e("v_add_u32 {}, s37, v8", vr(121 + t))
        e("s_mul_i32 s37, s34, {}", K3_WH)
        e("s_lshl_b32 s36, s35, 10")
        e("s_add_u32 s37, s37, s36")
        e("s_add_u32 {}, s37, {}", sr(50 + t), K3_WOFF)
        e("s_mov_b32 {}, s34", sr(54 + t))
        if t == 2:
            e("s_cmp_ge_u32 s33, 20")
            e("s_cbranch_scc0 K3_N2OK")
            e("v_mov_b32 {}, {}", vr(123), hex(OOB))
            e("s_mov_b32 s52, {}", K3_SCR)
            e("s_mov_b32 s56, 0")
            e.lab("K3_N2OK")
    for t in range(3):
        e("s_cmp_eq_u32 {}, 1", sr(54 + t))
        for q in range(4):
            e("s_cselect_b32 {}, {}, {}", sr(60 + 4 * t + q), sr(16 + q), sr(12 + q))
    e("s_lshl_b32 s58, s28, 10")
    e("s_lshr_b32 s34, s28, 2")
    e("s_and_b32 s35, s28, 3")
    e("v_and_b32 v3, 15, v1")
    e("v_lshrrev_b32 v4, 4, v1")
    e("s_lshl_b32 s33, s35, 4")
    e("v_add_u32 v5, s33, v3")
    e("v_bfe_u32 v6, v5, 1, 3")
    e("v_lshlrev_b32 v7, 7, v5")
    e("s_mul_i32 s33, s34, {}", K3_XH)
    e("v_add_u32 v7, s33, v7")
    e("v_and_b32 v8, 1, v4")
    e("v_lshl_add_u32 v7, v8, 3, v7")
    e("v_lshrrev_b32 v8, 1, v4")
    for ks in range(2):
        for s2 in range(2):
            e("v_add_u32 v9, {}, v8", 4 * ks + 2 * s2)
            e("v_xor_b32 v9, v9, v6")
            e("v_lshl_add_u32 {}, v9, 4, v7", vr(124 + 2 * ks + s2))
    e("v_bfe_u32 v6, v1, 2, 2")
    e("v_and_b32 v7, 3, v1")
    e("v_lshl_add_u32 v8, v4, 2, v6")
    e("v_mul_u32_u24 v8, 160, v8")
    e("v_lshl_add_u32 v8, v7, 3, v8")
    e("s_mul_i32 s33, s34, {}", K3_WH)
    e("s_add_u32 s33, s33, {}", K3_WOFF)
    e("v_add_u32 v128, s33, v8")
    for st in (1, 2, 3):
        for r in range(5):
            e("v_add_u32 {}, {}, {}", vr(124 + 8 * st + r), st * K3_STAGE, vr(124 + r))
    for r in range(32, 52):
        e("v_mov_b32 {}, 0", vr(r))

    def gload(kc):
        st = (kc % 4) * K3_STAGE
        for i in range(2):
            e("s_add_u32 m0, s58, {}", st + i * K3_XH)
            e("s_movk_i32 s37, {}", kc * 128 + i * 1280)
            e("buffer_load_dwordx4 v120, s[20:23], s37 offen lds")
        for t in range(3):
            e("s_add_u32 m0, {}, {}", sr(50 + t), st)
            e("s_mov_b32 s37, {}", kc * 64 * 1280)
            e("buffer_load_dwordx4 {}, {}, s37 offen lds", vr(121 + t), sr(60 + 4 * t, 4))

    FR = [8, 88]
    def freads(kc, ks, fs):
        b = FR[fs]
        a0 = 124 + 8 * (kc % 4)
        e("ds_read_b64 {}, {}", vr(b, 2), vr(a0 + 2 * ks))
        e("ds_read_b64 {}, {}", vr(b + 2, 2), vr(a0 + 2 * ks + 1))
        for jn in range(5):
            o = ks * 32 * 160 + jn * 32
            e("ds_read_b64_tr_b16 {}, {} offset:{}", vr(b + 4 + 4 * jn, 2), vr(a0 + 4), o)
            e("ds_read_b64_tr_b16 {}, {} offset:{}", vr(b + 4 + 4 * jn + 2, 2), vr(a0 + 4), o + 16 * 160)

    def mf(fs):
        b = FR[fs]
        for jn in range(5):
            e("v_mfma_f32_16x16x32_bf16 {0}, {1}, {2}, {0}", vr(32 + 4 * jn, 4), vr(b + 4 + 4 * jn, 4), vr(b, 4))

    def chunk(kc):
        more = kc + 1 <= 9
        freads(kc, 0, 0)
        freads(kc, 1, 1)
        if kc + 3 <= 9:
            gload(kc + 3)
        e("s_waitcnt lgkmcnt(12)")
        mf(0)
        e("s_waitcnt lgkmcnt(0)")
        mf(1)
        if more:
            e("s_waitcnt vmcnt({})", 10 if kc + 3 <= 9 else (5 if kc + 2 <= 9 else 0))
            e("s_barrier")

    ST_K[0] = 2
    stamp(e, 0)
    gload(0)
    gload(1)
    gload(2)
    e("s_waitcnt vmcnt(10)")
    e("s_barrier")
    stamp(e, 1)
    for kc in range(10):
        chunk(kc)
        stamp(e, 2 + kc)
    e("s_lshl_b32 s33, s30, 6")
    e("s_lshl_b32 s37, s35, 4")
    e("s_add_u32 s33, s33, s37")
    e("v_add_u32 v5, s33, v3")
    e("v_lshlrev_b32 v6, 2, v5")
    e("v_add_u32 v6, {}, v6", hex(WS_G))
    e("buffer_load_dword v7, v6, s[20:23], 0 offen")
    e("s_barrier")
    e("s_waitcnt vmcnt(0)")
    e("s_nop 7")
    e("s_mul_i32 s33, s35, 5120")
    e("v_lshlrev_b32 v8, 4, v1")
    e("v_add_u32 v8, s33, v8")
    e("s_cmp_eq_u32 s34, 0")
    e("s_cbranch_scc1 K3_RED")
    e("v_sub_f32 v7, 1.0, v7")
    for r in range(20):
        e("v_mul_f32 {0}, {0}, v7", vr(32 + r))
    for jn in range(5):
        e("ds_write_b128 v8, {} offset:{}", vr(32 + 4 * jn, 4), jn * 1024)
    e("s_waitcnt lgkmcnt(0)")
    e("s_barrier")
    e("s_branch K3_END")
    e.lab("K3_RED")
    e("s_barrier")
    for jn in range(5):
        e("ds_read_b128 {}, v8 offset:{}", vr(64 + 4 * jn, 4), jn * 1024)
    e("v_mul_u32_u24 v9, 1280, v5")
    e("s_mul_i32 s33, s29, 160")
    e("v_add_u32 v9, s33, v9")
    e("v_lshl_add_u32 v9, v4, 3, v9")
    e("s_waitcnt lgkmcnt(0)")
    for r in range(20):
        e("v_fma_f32 {0}, {0}, v7, {1}", vr(32 + r), vr(64 + r))
    for jn in range(5):
        e("v_cvt_pk_bf16_f32 v10, {}, {}", vr(32 + 4 * jn), vr(32 + 4 * jn + 1))
        e("v_cvt_pk_bf16_f32 v11, {}, {}", vr(32 + 4 * jn + 2), vr(32 + 4 * jn + 3))
        e("buffer_store_dwordx2 v[10:11], v9, s[24:27], 0 offen offset:{}", jn * 32)
        e("s_nop 0")
    e.lab("K3_END")
    e("s_endpgm")


HEADER = """; Kernarg layout (80 bytes): A_x@0 A_wqkv@8 A_wo@16 B_x@24 B_wqkv@32 B_wo@40 gate_w@48 out@56 debug@64 ws@72
; @launch kernel=qkv_kernel grid=(256,1,1) block=(512,1,1) lds={k1}
; @launch kernel=attn_kernel grid=(256,1,1) block=(512,1,1) lds={k2}
; @launch kernel=oproj_kernel grid=(256,1,1) block=(512,1,1) lds={k3}
.amdgcn_target "amdgcn-amd-amdhsa--gfx950"
.text
"""


def main():
    global STAMPS
    STAMPS = "--stamps" in sys.argv
    if STAMPS:
        sys.argv.remove("--stamps")
    e = E()
    gen_k1(e)
    gen_k2(e)
    gen_k3(e)
    out = HEADER.format(k1=K1_LDS, k2=K2_LDS, k3=K3_LDS) + e.text()
    out += '.section .rodata,"a"\n.p2align 6\n'
    out += kd("qkv_kernel", 256).lstrip("\n")
    out += ".p2align 6\n" + kd("attn_kernel", 256 if STAMPS else 236).lstrip("\n")
    out += ".p2align 6\n" + kd("oproj_kernel", 256 if STAMPS else 168).lstrip("\n")
    path = sys.argv[1] if len(sys.argv) > 1 else "gated_mix__mha_block__sliding_block__prompt.s"
    open(path, "w").write(out)


if __name__ == "__main__":
    main()
```

```python
import sys

WS_KV = 0
WS_K2 = 0x0C00000
WS_Q1 = 0x0D00000
WS_Q2 = 0x1100000
WS_G = 0x1200000
WS_O = 0x1300000
WS_SIZE = 0x1300000 + 2048 * 2560
OOB = 0x7FFFFFF0

QSCALE = (20 ** -0.5) * 1.4426950408889634
import os
TPRIME = float(os.environ.get("TPRIME", "80.0"))
THR = float(os.environ.get("THR", str(2.0 ** 40)))


def f32bits(x):
    import struct
    return struct.unpack("<I", struct.pack("<f", x))[0]


class E:
    def __init__(self):
        self.l = []

    def __call__(self, s, *a):
        self.l.append("    " + (s.format(*a) if a else s))

    def lab(self, s):
        self.l.append(s + ":")

    def raw(self, s):
        self.l.append(s)

    def text(self):
        return "\n".join(self.l) + "\n"


def vr(b, n=1):
    return f"v{b}" if n == 1 else f"v[{b}:{b + n - 1}]"


def sr(b, n=1):
    return f"s{b}" if n == 1 else f"s[{b}:{b + n - 1}]"


def srd(e, d, base, nbytes):
    e("s_mov_b32 {}, {}", sr(d), sr(base))
    e("s_and_b32 {}, {}, 0xffff", sr(d + 1), sr(base + 1))
    e("s_mov_b32 {}, {}", sr(d + 2), hex(nbytes))
    e("s_mov_b32 {}, 0x00020000", sr(d + 3))


def div20(e, dst_q, dst_r, src, tmp):
    e("v_mul_u32_u24 {}, 3277, {}", vr(dst_q), vr(src))
    e("v_lshrrev_b32 {}, 16, {}", vr(dst_q), vr(dst_q))
    e("v_mul_u32_u24 {}, 20, {}", vr(tmp), vr(dst_q))
    e("v_sub_u32 {}, {}, {}", vr(dst_r), vr(src), vr(tmp))


STAMPS = False
WS_ST = 0x2000000
ST_K = [0]
def rstamp(e, idx):
    if not STAMPS:
        return
    e("s_memrealtime s[96:97]")
    e("s_lshl_b32 s98, s2, 3")
    e("s_add_u32 s98, s98, s28")
    e("s_lshl_b32 s98, s98, 6")
    e("s_add_u32 s98, s98, {}", hex(WS_ST + ST_K[0] * 0x40000 + idx * 4))
    e("s_waitcnt lgkmcnt(0)")
    e("v_mov_b32 v250, s96")
    e("v_mov_b32 v251, s98")
    e("buffer_store_dword v250, v251, s[20:23], 0 offen")


def stamp(e, idx):
    if not STAMPS:
        return
    e("s_memtime s[96:97]")
    e("s_lshl_b32 s98, s2, 3")
    e("s_add_u32 s98, s98, s28")
    e("s_lshl_b32 s98, s98, 6")
    e("s_add_u32 s98, s98, {}", hex(WS_ST + ST_K[0] * 0x40000 + idx * 4))
    e("s_waitcnt lgkmcnt(0)")
    e("v_mov_b32 v250, s96")
    e("v_mov_b32 v251, s98")
    e("buffer_store_dword v250, v251, s[20:23], 0 offen")


def kd(name, vgpr, sgpr=102):
    return f"""
.amdhsa_kernel {name}
  .amdhsa_next_free_vgpr {vgpr}
  .amdhsa_next_free_sgpr {sgpr}
  .amdhsa_accum_offset {vgpr}
  .amdhsa_group_segment_fixed_size 0
  .amdhsa_kernarg_size 80
  .amdhsa_user_sgpr_count 2
  .amdhsa_user_sgpr_kernarg_segment_ptr 1
  .amdhsa_system_sgpr_workgroup_id_x 1
.end_amdhsa_kernel
"""


K1_XREG = 256 * 128
K1_WREG = 64 * 256
K1_STAGE = K1_XREG + K1_WREG
K1_LDS = 3 * K1_STAGE


def gen_k1(e):
    N = "qkv_kernel"
    e.raw(f".globl {N}\n.p2align 8\n.type {N},@function\n{N}:")
    e("s_cmp_ge_u32 s2, 256")
    e("s_cbranch_scc1 K1_END")
    e("s_load_dwordx4 s[4:7], s[0:1], 0")
    e("s_load_dwordx4 s[8:11], s[0:1], 24")
    e("s_load_dwordx2 s[24:25], s[0:1], 48")
    e("s_load_dwordx2 s[26:27], s[0:1], 72")
    e("s_load_dwordx2 s[40:41], s[0:1], 16")
    e("s_load_dwordx2 s[42:43], s[0:1], 40")
    e("v_and_b32 v1, 63, v0")
    e("v_lshrrev_b32 v2, 6, v0")
    e("s_nop 0")
    e("v_readfirstlane_b32 s28, v2")
    e("s_waitcnt lgkmcnt(0)")
    srd(e, 20, 26, 0x3000000 if STAMPS else WS_SIZE)
    e("s_and_b32 s29, s2, 7")
    e("s_lshr_b32 s30, s2, 3")
    e("s_and_b32 s33, s30, 3")
    e("s_lshr_b32 s34, s30, 2")
    e("s_lshr_b32 s35, s29, 1")
    e("s_and_b32 s29, s29, 1")
    e("s_cmp_ge_u32 s35, 2")
    e("s_cselect_b32 s36, 1, 0")
    e("s_cmp_eq_u32 s34, 7")
    e("s_cselect_b32 s37, 1, 0")
    e("s_and_b32 s36, s36, s37")
    e("s_lshl_b32 s38, s29, 2")
    e("s_add_u32 s38, s38, s33")
    e("s_cmp_eq_u32 s36, 1")
    e("s_cbranch_scc0 K1_MAIN")
    e("s_sub_u32 s39, s35, 2")
    e("s_lshl_b32 s39, s39, 3")
    e("s_add_u32 s39, s39, s38")
    e("s_branch K1_GATE")
    e.lab("K1_MAIN")
    e("s_mov_b32 s29, s38")
    e("s_lshl_b32 s30, s35, 3")
    e("s_cmp_eq_u32 s35, 3")
    e("s_cselect_b32 s30, 23, s30")
    e("s_add_u32 s30, s30, s34")
    e("s_cmp_ge_u32 s30, 15")
    e("s_cselect_b32 s31, 1, 0")
    e("s_cselect_b32 s6, s10, s6")
    e("s_cselect_b32 s7, s11, s7")
    e("s_mul_i32 s32, s31, 15")
    e("s_sub_u32 s32, s30, s32")
    srd(e, 12, 4, 2048 * 1280)
    srd(e, 16, 6, 640 * 3840)
    e("s_and_b32 s34, s28, 3")
    e("s_lshr_b32 s35, s28, 2")
    e("v_lshrrev_b32 v3, 3, v1")
    e("v_and_b32 v4, 7, v1")
    e("v_lshrrev_b32 v5, 4, v1")
    e("s_lshl_b32 s33, s29, 8")
    e("s_lshl_b32 s36, s28, 5")
    e("s_add_u32 s33, s33, s36")
    e("v_add_u32 v6, s33, v3")
    e("v_mul_u32_u24 v6, 1280, v6")
    e("v_xor_b32 v7, v4, v5")
    e("v_lshl_add_u32 v200, v7, 4, v6")
    e("v_xor_b32 v7, 4, v7")
    e("v_lshl_add_u32 v201, v7, 4, v6")
    e("v_and_b32 v4, 15, v1")
    e("v_lshlrev_b32 v6, 2, v5")
    e("v_xor_b32 v4, v4, v6")
    e("s_lshl_b32 s33, s28, 3")
    e("v_add_u32 v6, s33, v5")
    e("v_mul_u32_u24 v6, 3840, v6")
    e("v_lshl_add_u32 v6, v4, 4, v6")
    e("s_lshl_b32 s33, s32, 8")
    e("v_add_u32 v203, s33, v6")
    e("v_and_b32 v3, 31, v1")
    e("v_lshrrev_b32 v4, 5, v1")
    e("v_bfe_u32 v5, v1, 1, 3")
    e("s_lshl_b32 s33, s34, 6")
    e("v_add_u32 v6, s33, v3")
    e("v_lshlrev_b32 v6, 7, v6")
    for ks in range(4):
        e("v_add_u32 v7, {}, v4", 2 * ks)
        e("v_xor_b32 v7, v7, v5")
        e("v_lshl_add_u32 {}, v7, 4, v6", vr(204 + ks))
    e("v_lshrrev_b32 v5, 4, v1")
    e("v_bfe_u32 v6, v1, 2, 2")
    e("v_and_b32 v7, 3, v1")
    e("v_lshrrev_b32 v8, 1, v5")
    e("v_lshl_add_u32 v8, v8, 3, v6")
    e("v_lshlrev_b32 v8, 8, v8")
    e("v_and_b32 v9, 1, v5")
    e("v_lshl_add_u32 v8, v9, 5, v8")
    e("v_lshl_add_u32 v8, v7, 3, v8")
    e("v_add_u32 v8, {}, v8", K1_XREG)
    e("s_lshl_b32 s33, s35, 1")
    for j in range(2):
        e("v_mov_b32 v9, s33")
        if j:
            e("v_add_u32 v9, 1, v9")
        e("v_xor_b32 v9, v9, v6")
        e("v_lshl_add_u32 {}, v9, 6, v8", vr(208 + j))
    for r in range(64, 128):
        e("v_mov_b32 {}, 0", vr(r))
    e("s_lshl_b32 s38, s28, 12")
    e("s_lshl_b32 s39, s28, 11")
    e("s_add_u32 s39, s39, {}", K1_XREG)

    def gload(kc):
        st = (kc % 3) * K1_STAGE
        for i in range(4):
            e("s_add_u32 m0, s38, {}", st + i * 1024)
            e("s_movk_i32 s37, {}", kc * 128 + i * 8 * 1280)
            e("buffer_load_dwordx4 {}, s[12:15], s37 offen lds", vr(200 + (i & 1)))
        for i in range(2):
            e("s_add_u32 m0, s39, {}", st + i * 1024)
            e("s_mov_b32 s37, {}", (kc * 64 + 4 * i) * 3840)
            e("buffer_load_dwordx4 v203, s[16:19], s37 offen lds")

    XF = [128, 144]

    def fread_list(kc, ks, fs):
        st = (kc % 3) * K1_STAGE
        b = XF[fs]
        L = []
        for i in range(2):
            L.append(("X", vr(b + 4 * i, 4), 204 + ks, st + i * 4096))
        for j in range(2):
            o = st + ks * 16 * 256
            L.append(("W", vr(b + 8 + 4 * j, 2), 208 + j, o))
            L.append(("W", vr(b + 8 + 4 * j + 2, 2), 208 + j, o + 4 * 256))
        return L

    def emit_read(t):
        kind, dst, areg, off = t
        hi = off // K1_STAGE
        o = off - hi * K1_STAGE
        a = areg + 8 * hi
        if kind == "X":
            e("ds_read_b128 {}, {} offset:{}", dst, vr(a), o)
        else:
            e("ds_read_b64_tr_b16 {}, {} offset:{}", dst, vr(a), o)

    for st in (1, 2):
        for r in range(6):
            e("v_add_u32 {}, {}, {}", vr(204 + 8 * st + r), st * K1_STAGE, vr(204 + r))

    def mfma_list(fs, vorient):
        b = XF[fs]
        L = []
        for i in range(2):
            for j in range(2):
                acc = 64 + 16 * (2 * i + j)
                xf = vr(b + 4 * i, 4)
                wf = vr(b + 8 + 4 * j, 4)
                if vorient:
                    L.append("v_mfma_f32_32x32x16_bf16 {}, {}, {}, {}".format(vr(acc, 16), xf, wf, vr(acc, 16)))
                else:
                    L.append("v_mfma_f32_32x32x16_bf16 {}, {}, {}, {}".format(vr(acc, 16), wf, xf, vr(acc, 16)))
        return L

    def chunk(kc, vorient):
        more = kc + 1 <= 9
        for t in fread_list(kc, 0, 0):
            emit_read(t)
        if kc + 2 <= 9:
            gload(kc + 2)
        for ks in range(4):
            e("s_waitcnt lgkmcnt(0)")
            M = mfma_list(ks & 1, vorient)
            R = fread_list(kc, ks + 1, (ks + 1) & 1) if ks < 3 else []
            per = 2
            for m in range(4):
                e(M[m])
                for t in R[m * per:(m + 1) * per]:
                    emit_read(t)
        if more:
            e("s_waitcnt vmcnt({})", 6 if kc + 2 <= 9 else 0)
            e("s_barrier")

    ST_K[0] = 1
    stamp(e, 0)
    gload(0)
    gload(1)
    e("s_waitcnt vmcnt(6)")
    e("s_barrier")
    e("s_cmp_ge_u32 s32, 10")
    e("s_cbranch_scc1 K1_VLOOP")
    for vorient, lab in ((False, "K1_QK"), (True, "K1_V")):
        if vorient:
            e.lab("K1_VLOOP")
        stamp(e, 1)
        for kc in range(10):
            chunk(kc, vorient)
            stamp(e, 2 + kc)
        e("s_nop 15")
        e("s_nop 3")
        if vorient:
            k1_epi_v(e)
        else:
            k1_epi_qk(e)
        stamp(e, 12)
        e("s_waitcnt vmcnt(0)")
        stamp(e, 13)
        e("s_branch K1_END")

    e.lab("K1_GATE")
    srd(e, 12, 4, 2048 * 1280)
    srd(e, 16, 24, 1280)
    e("s_lshl_b32 s29, s39, 7")
    e("s_lshl_b32 s30, s28, 4")
    e("s_add_u32 s29, s29, s30")
    e("v_lshlrev_b32 v3, 2, v1")
    for i in range(5):
        e("buffer_load_dword {}, v3, s[16:19], 0 offen offset:{}", vr(10 + i), i * 256)
    e("s_mul_i32 s30, s29, 1280")
    for r in range(16):
        for i in range(5):
            e("buffer_load_dword {}, v3, s[12:15], s30 offen offset:{}", vr(32 + r * 5 + i), i * 256)
        if r < 15:
            e("s_add_u32 s30, s30, 1280")
    e("s_waitcnt vmcnt(0)")
    for i in range(5):
        e("v_lshlrev_b32 {}, 16, {}", vr(16 + 2 * i), vr(10 + i))
        e("v_and_b32 {}, 0xffff0000, {}", vr(17 + 2 * i), vr(10 + i))
    for r in range(16):
        acc = 112 + r
        for i in range(5):
            x = 32 + r * 5 + i
            e("v_lshlrev_b32 v4, 16, {}", vr(x))
            e("v_and_b32 v5, 0xffff0000, {}", vr(x))
            if i == 0:
                e("v_mul_f32 {}, v4, {}", vr(acc), vr(16))
            else:
                e("v_fmac_f32 {}, v4, {}", vr(acc), vr(16 + 2 * i))
            e("v_fmac_f32 {}, v5, {}", vr(acc), vr(17 + 2 * i))
    for hop, patt in enumerate((0x041F, 0x081F, 0x101F, 0x201F, 0x401F)):
        for r in range(16):
            e("ds_swizzle_b32 {}, {} offset:{}", vr(128 + r), vr(112 + r), hex(patt))
        e("s_waitcnt lgkmcnt(0)")
        for r in range(16):
            e("v_add_f32 {0}, {0}, {1}", vr(112 + r), vr(128 + r))
    for r in range(16):
        e("v_mov_b32 {}, {}", vr(128 + r), vr(112 + r))
    e("s_nop 1")
    for r in range(16):
        e("v_permlane32_swap_b32 {}, {}", vr(112 + r), vr(128 + r))
    for r in range(16):
        e("v_add_f32 {0}, {0}, {1}", vr(112 + r), vr(128 + r))
    e("v_mov_b32 v4, {}", vr(112))
    for r in range(1, 16):
        e("v_cmp_eq_u32 vcc, {}, v1", r)
        e("s_nop 1")
        e("v_cndmask_b32 v4, v4, {}, vcc", vr(112 + r))
    e("v_mul_f32 v4, {}, v4", hex(f32bits(-1.4426950408889634)))
    e("v_exp_f32 v4, v4")
    e("s_nop 0")
    e("v_add_f32 v4, 1.0, v4")
    e("v_rcp_f32 v4, v4")
    e("v_add_u32 v5, s29, v1")
    e("v_lshlrev_b32 v5, 2, v5")
    e("v_add_u32 v5, {}, v5", hex(WS_G))
    e("v_cmp_gt_u32 vcc, 16, v1")
    e("v_mov_b32 v6, {}", hex(OOB))
    e("s_nop 0")
    e("v_cndmask_b32 v5, v6, v5, vcc")
    e("buffer_store_dword v4, v5, s[20:23], 0 offen")
    srd(e, 12, 40, 640 * 1280)
    srd(e, 16, 42, 640 * 1280)
    e("s_mul_i32 s30, s39, 51200")
    e("v_lshlrev_b32 v3, 4, v0")
    for i in range(7):
        e("buffer_load_dwordx4 {}, v3, s[12:15], s30 offen", vr(32 + 8 * i, 4))
        e("buffer_load_dwordx4 {}, v3, s[16:19], s30 offen", vr(36 + 8 * i, 4))
        if i < 6:
            e("s_add_u32 s30, s30, 8192")
    e("s_waitcnt vmcnt(0)")
    e.lab("K1_END")
    e("s_endpgm")


def k1_epi_qk(e):
    e("v_and_b32 v3, 31, v1")
    e("v_lshrrev_b32 v4, 5, v1")
    e("s_cmp_lt_u32 s32, 5")
    e("s_cselect_b32 s40, 1, 0")
    e("s_sub_u32 s41, s32, 5")
    e("s_cmp_lt_u32 s32, 5")
    e("s_cselect_b32 s41, s32, s41")
    e("s_movk_i32 s42, 3072")
    e("s_mov_b32 s43, {}", hex(WS_KV))
    e("s_mov_b32 s44, {}", hex(WS_K2))
    e("s_cmp_eq_u32 s40, 1")
    e("s_cbranch_scc0 K1_QKISK")
    e("s_movk_i32 s42, 1024")
    e("s_mov_b32 s43, {}", hex(WS_Q1))
    e("s_mov_b32 s44, {}", hex(WS_Q2))
    e("s_mov_b32 s47, {}", hex(f32bits(QSCALE)))
    for r in range(64, 128):
        e("v_mul_f32 {0}, s47, {0}", vr(r))
    e.lab("K1_QKISK")
    e("s_lshl_b32 s45, s31, 11")
    e("s_lshl_b32 s46, s29, 3")
    e("s_add_u32 s45, s45, s46")
    e("s_lshl_b32 s46, s34, 1")
    e("s_add_u32 s45, s45, s46")
    e("s_lshl_b32 s46, s41, 5")
    e("s_lshl_b32 s47, s35, 4")
    e("s_add_u32 s46, s46, s47")
    e("v_add_u32 v5, s46, v4")
    for j in range(2):
        for g in range(4):
            e("v_add_u32 v6, {}, v5", j * 8 + 2 * g)
            e("v_mul_u32_u24 v7, 13108, v6")
            e("v_lshrrev_b32 v7, 16, v7")
            e("v_mul_u32_u24 v8, 5, v7")
            e("v_sub_u32 v8, v6, v8")
            e("v_lshlrev_b32 v9, 6, v7")
            e("v_add_u32 v9, s45, v9")
            e("v_mul_lo_u32 v10, v9, s42")
            e("v_add_u32 v10, s43, v10")
            e("v_lshrrev_b32 v11, 1, v8")
            e("v_lshl_add_u32 v11, v11, 5, v3")
            e("v_lshl_add_u32 v10, v11, 4, v10")
            e("v_and_b32 v11, 1, v8")
            e("v_lshl_add_u32 v10, v11, 3, v10")
            e("v_lshl_add_u32 v12, v9, 8, s44")
            e("v_lshl_add_u32 v12, v3, 3, v12")
            e("v_cmp_eq_u32 vcc, 4, v8")
            e("v_mov_b32 v13, s42")
            e("v_mov_b32 v14, 256")
            e("v_cndmask_b32 v10, v10, v12, vcc")
            e("v_cndmask_b32 v13, v13, v14, vcc")
            e("v_add_u32 v13, v10, v13")
            for i in range(2):
                acc = 64 + 16 * (2 * i + j) + 4 * g
                e("v_cvt_pk_bf16_f32 v16, {}, {}", vr(acc), vr(acc + 1))
                e("v_cvt_pk_bf16_f32 v17, {}, {}", vr(acc + 2), vr(acc + 3))
                e("buffer_store_dwordx2 v[16:17], {}, s[20:23], 0 offen", vr(10 if i == 0 else 13))
                e("s_nop 0")


def k1_epi_v(e):
    e("v_and_b32 v3, 31, v1")
    e("v_lshrrev_b32 v4, 5, v1")
    e("s_sub_u32 s41, s32, 10")
    e("s_lshl_b32 s46, s41, 7")
    e("s_lshl_b32 s47, s35, 6")
    e("s_add_u32 s46, s46, s47")
    e("s_lshl_b32 s45, s31, 11")
    e("s_lshl_b32 s47, s29, 3")
    e("s_add_u32 s45, s45, s47")
    e("s_lshl_b32 s47, s34, 1")
    e("s_add_u32 s45, s45, s47")
    e("s_movk_i32 s48, 3072")
    e("v_mov_b32 v20, 0x3f803f80")
    e("v_mov_b32 v21, 0x3f803f80")
    e("v_mov_b32 v22, 0x3f803f80")
    e("v_mov_b32 v23, 0x3f803f80")
    for j in range(2):
        e("v_add_u32 v5, s46, v3")
        if j:
            e("v_add_u32 v5, 32, v5")
        div20(e, 7, 8, 5, 9)
        e("v_lshlrev_b32 v9, 6, v7")
        e("v_add_u32 v9, s45, v9")
        e("v_mul_u32_u24 v10, 3072, v9")
        e("v_lshl_add_u32 v11, v4, 5, v8")
        e("v_lshl_add_u32 v10, v11, 4, v10")
        e("v_add_u32 v10, 1024, v10")
        e("v_add_u32 v12, 320, v10")
        e("v_mov_b32 v13, {}", hex(OOB))
        e("v_cmp_eq_u32 vcc, 0, v8")
        e("s_nop 1")
        e("v_cndmask_b32 v12, v13, v12, vcc")
        for i in range(2):
            acc = 64 + 16 * (2 * i + j)
            so = "0" if i == 0 else "s48"
            for half in range(2):
                for q in range(4):
                    e("v_cvt_pk_bf16_f32 {}, {}, {}", vr(16 + q), vr(acc + 8 * half + 2 * q), vr(acc + 8 * half + 2 * q + 1))
                e("buffer_store_dwordx4 v[16:19], v10, s[20:23], {} offen offset:{}", so, half * 1024)
                e("buffer_store_dwordx4 v[20:23], v12, s[20:23], {} offen offset:{}", so, half * 1024)
                e("s_nop 1")


K2_MAIN = 16 * 3072
K2_BUF = K2_MAIN + 4096
K2_LDS = 2 * K2_BUF + 512

S0, S1, PP, PB, CC, OO = 0 + 32, 48, 64, 80, 96, 112
Q1, Q2 = 128, 132
KB = [136, 144]
VB = [152, 160]
STG = 176
NEGINF = 202
CVAL = 203
T0, T1, T2, T3 = 204, 205, 206, 207
AK, AK2 = 208, 209
AKB, AK2B = 210, 211
GV = 212


def blk_softmax(e, cur, nxt, tag, uid, masked=None):
    for r in range(16):
        e("v_exp_f32 {}, {}", vr(PP + r), vr(cur + r))
    for r in range(8):
        e("v_cvt_pk_bf16_f32 {}, {}, {}", vr(PB + r), vr(PP + 2 * r), vr(PP + 2 * r + 1))
    e("v_or3_b32 {}, {}, {}, {}", vr(T0), vr(PB), vr(PB + 1), vr(PB + 2))
    e("v_or3_b32 {}, {}, {}, {}", vr(T1), vr(PB + 3), vr(PB + 4), vr(PB + 5))
    e("v_or3_b32 {}, {}, {}, {}", vr(T0), vr(T0), vr(PB + 6), vr(PB + 7))
    e("v_or_b32 {0}, {0}, {1}", vr(T0), vr(T1))
    e("v_and_b32 {0}, 0x40004000, {0}", vr(T0))
    e("v_cmp_ne_u32 vcc, 0, {}", vr(T0))
    e("s_cbranch_vccnz RARE_{}", uid)
    e.lab(f"BACK_{uid}")


def rare_path(e, cur, nxt, uid, first=False, ret=True):
    e.lab(f"RARE_{uid}")
    e("v_max3_f32 {}, {}, {}, {}", vr(T0), vr(cur), vr(cur + 1), vr(cur + 2))
    e("v_max3_f32 {}, {}, {}, {}", vr(T1), vr(cur + 3), vr(cur + 4), vr(cur + 5))
    for r in range(6, 14, 4):
        e("v_max3_f32 {0}, {0}, {1}, {2}", vr(T0), vr(cur + r), vr(cur + r + 1))
        e("v_max3_f32 {0}, {0}, {1}, {2}", vr(T1), vr(cur + r + 2), vr(cur + r + 3))
    e("v_max3_f32 {0}, {0}, {1}, {2}", vr(T0), vr(cur + 14), vr(cur + 15))
    e("v_max_f32 {0}, {0}, {1}", vr(T0), vr(T1))
    e("v_mov_b32 {}, {}", vr(T1), vr(T0))
    e("s_nop 1")
    e("v_permlane32_swap_b32 {}, {}", vr(T0), vr(T1))
    e("v_max_f32 {0}, {0}, {1}", vr(T0), vr(T1))
    e("v_add_f32 {0}, {1}, {0}", vr(T0), hex(f32bits(TPRIME)))
    if not first:
        e("v_max_f32 {0}, 0, {0}", vr(T0))
    e("v_max_f32 {}, 0, {}", vr(T1), vr(T0))
    e("v_sub_f32 {}, 0, {}", vr(T1), vr(T1))
    e("v_exp_f32 {0}, {0}", vr(T1))
    e("v_sub_f32 {0}, {0}, {1}", vr(CVAL), vr(T0))
    for r in range(16):
        e("v_mov_b32 {}, {}", vr(CC + r), vr(CVAL))
    for r in range(16):
        e("v_mul_f32 {0}, {0}, {1}", vr(OO + r), vr(T1))
    for r in range(16):
        e("v_sub_f32 {0}, {0}, {1}", vr(cur + r), vr(T0))
    if nxt is not None:
        for r in range(16):
            e("v_sub_f32 {0}, {0}, {1}", vr(nxt + r), vr(T0))
    for r in range(16):
        e("v_exp_f32 {}, {}", vr(PP + r), vr(cur + r))
    for r in range(8):
        e("v_cvt_pk_bf16_f32 {}, {}, {}", vr(PB + r), vr(PP + 2 * r), vr(PP + 2 * r + 1))
    e("s_nop 1")
    if ret:
        e("s_branch BACK_{}", uid)


def qk(e, dst, kb):
    e("v_mfma_f32_32x32x16_bf16 {}, {}, {}, {}", vr(dst, 16), vr(kb, 4), vr(Q1, 4), vr(CC, 16))
    e("v_mfma_f32_32x32x16_bf16 {0}, {1}, {2}, {0}", vr(dst, 16), vr(kb + 4, 4), vr(Q2, 4))


def pv(e, vb):
    e("v_mfma_f32_32x32x16_bf16 {0}, {1}, {2}, {0}", vr(OO, 16), vr(vb, 4), vr(PB, 4))
    e("v_mfma_f32_32x32x16_bf16 {0}, {1}, {2}, {0}", vr(OO, 16), vr(vb + 4, 4), vr(PB + 4, 4))


def rd_k(e, kb, a, a2, blk):
    e("ds_read_b128 {}, {} offset:{}", vr(kb, 4), vr(a), blk * 3072)
    e("ds_read_b64 {}, {} offset:{}", vr(kb + 4, 2), vr(a2), blk * 256)


def rd_v(e, vb, a, blk):
    e("ds_read_b128 {}, {} offset:{}", vr(vb, 4), vr(a), blk * 3072 + 1024)
    e("ds_read_b128 {}, {} offset:{}", vr(vb + 4, 4), vr(a), blk * 3072 + 2048)


def attn_epilogue(e, p):
    e("s_nop 15")
    e("v_mov_b32 {}, {}", vr(T0), vr(OO + 8))
    e("v_mov_b32 {}, {}", vr(T1), vr(OO + 8))
    e("s_nop 1")
    e("v_permlane32_swap_b32 {}, {}", vr(T0), vr(T1))
    e("v_rcp_f32 {0}, {0}", vr(T1))
    e("s_nop 0")
    for r in range(12):
        e("v_mul_f32 {0}, {0}, {1}", vr(OO + r), vr(T1))
    for g in range(3):
        e("v_cvt_pk_bf16_f32 {}, {}, {}", vr(T2), vr(OO + 4 * g), vr(OO + 4 * g + 1))
        e("v_cvt_pk_bf16_f32 {}, {}, {}", vr(T3), vr(OO + 4 * g + 2), vr(OO + 4 * g + 3))
        e("buffer_store_dwordx2 {}, {}, s[20:23], 0 offen offset:{}", vr(T2, 2), vr(214 if g == 2 else 213), p * 1280 + g * 16)
        e("s_nop 0")


def gen_k2(e):
    N = "attn_kernel"
    ST_K[0] = 0
    e.raw(f".globl {N}\n.p2align 8\n.type {N},@function\n{N}:")
    e("s_cmp_ge_u32 s2, 256")
    e("s_cbranch_scc1 K2_END")
    e("s_load_dwordx2 s[26:27], s[0:1], 72")
    e("v_and_b32 v1, 63, v0")
    e("v_lshrrev_b32 v2, 6, v0")
    e("s_nop 0")
    e("v_readfirstlane_b32 s28, v2")
    e("s_and_b32 s29, s2, 31")
    e("s_lshr_b32 s30, s2, 5")
    e("s_waitcnt lgkmcnt(0)")
    srd(e, 20, 26, 0x3000000 if STAMPS else WS_SIZE)
    e("v_and_b32 v3, 31, v1")
    e("v_lshrrev_b32 v4, 5, v1")
    e("v_lshlrev_b32 v5, 4, v0")
    e("v_lshlrev_b32 v6, 3, v0")
    e("v_add_u32 v7, {}, v6", K2_MAIN)
    e("s_lshl_b32 s31, s29, 6")
    e("s_lshl_b32 s32, s30, 3")
    e("s_add_u32 s32, s32, s28")
    e("v_lshlrev_b32 v8, 4, v1")
    e("v_lshlrev_b32 v9, 3, v3")
    e("v_mov_b32 v10, {}", hex(OOB))
    e("v_cmp_eq_u32 vcc, 0, v4")
    e("s_nop 1")
    e("v_cndmask_b32 v10, v10, v9, vcc")
    e("v_mov_b32 {}, v8", vr(AK))
    e("v_add_u32 {}, {}, v9", vr(AK2), K2_MAIN)

    QB = 236

    def load_q(p):
        q1, q2 = (Q1, Q2) if p == 0 else (QB, QB + 4)
        e("s_add_u32 s33, s31, s32")
        if p:
            e("s_add_u32 s33, s33, 2048")
        e("s_lshl_b32 s34, s33, 10")
        e("s_add_u32 s34, s34, {}", hex(WS_Q1))
        e("s_lshl_b32 s35, s33, 8")
        e("s_add_u32 s35, s35, {}", hex(WS_Q2))
        e("buffer_load_dwordx4 {}, v8, s[20:23], s34 offen", vr(q1, 4))
        e("buffer_load_dwordx2 {}, v10, s[20:23], s35 offen", vr(q2, 2))
        if p == 0:
            e("v_mov_b32 {}, 0", vr(Q2 + 2))
            e("v_mov_b32 {}, 0", vr(Q2 + 3))

    def stage_load():
        e("s_mul_i32 s37, s36, 3072")
        for i in range(6):
            e("buffer_load_dwordx4 {}, v5, s[20:23], s37 offen", vr(STG + 4 * i, 4))
            if i < 5:
                e("s_add_u32 s37, s37, 8192")
        e("s_lshl_b32 s37, s36, 8")
        e("s_add_u32 s37, s37, {}", hex(WS_K2))
        e("buffer_load_dwordx2 {}, v6, s[20:23], s37 offen", vr(STG + 24, 2))

    def stage_write():
        e("v_add_u32 v11, s38, v5")
        e("v_add_u32 v12, s38, v7")
        for i in range(6):
            e("ds_write_b128 v11, {} offset:{}", vr(STG + 4 * i, 4), i * 8192)
        e("ds_write_b64 v12, {}", vr(STG + 24, 2))

    for kb in KB:
        e("v_mov_b32 {}, 0", vr(kb + 6))
        e("v_mov_b32 {}, 0", vr(kb + 7))
    e("v_mov_b32 {}, 0xff800000", vr(NEGINF))
    e("v_lshlrev_b32 v11, 2, v4")
    for r in range(16):
        e("v_add_u32 v12, {}, v11", (r % 4) + 8 * (r // 4))
        e("v_cmp_le_u32 {}, v12, v3", sr(64 + 2 * r, 2))
    e("s_lshl_b32 s33, s32, 5")
    e("v_add_u32 v11, s33, v3")
    e("v_mul_u32_u24 v11, 2560, v11")
    e("s_mul_i32 s33, s29, 40")
    e("s_add_u32 s33, s33, {}", hex(WS_O))
    e("v_add_u32 v11, s33, v11")
    e("v_lshl_add_u32 v213, v4, 3, v11")
    e("v_mov_b32 v12, {}", hex(OOB - 4096))
    e("v_cmp_eq_u32 vcc, 0, v4")
    e("s_nop 1")
    e("v_cndmask_b32 v214, v12, v213, vcc")

    stamp(e, 0)
    rstamp(e, 12)
    load_q(0)
    load_q(1)
    e("s_mov_b32 s36, s31")
    stage_load()
    e("s_waitcnt vmcnt(0)")
    e("s_mov_b32 s38, 0")
    stage_write()
    e("s_waitcnt lgkmcnt(0)")
    e("s_barrier")
    for r in range(16):
        e("v_mov_b32 {}, 0", vr(CC + r))
        e("v_mov_b32 {}, 0", vr(OO + r))
    e("v_mov_b32 {}, 0", vr(CVAL))
    e("s_mov_b32 s39, 0")
    stamp(e, 1)
    rare = []
    KQ, VQ = KB[0], VB[0]
    OS, CVS = 216, 232

    def a_block(i, checked, cur, nxt, a, a2, off, last, uid=None, wr=None, vm=False, step=1, nok=False, premask=False, k2off=None, diagmask=False):
        e("s_waitcnt lgkmcnt({})", 0 if nok else 2)
        if premask:
            for r in range(16):
                e("v_cndmask_b32 {0}, {0}, {1}, {2}", vr(cur + r), vr(NEGINF), sr(64 + 2 * r, 2))
        if diagmask:
            for r in range(16):
                e("v_cndmask_b32 {0}, {1}, {0}, {2}", vr(cur + r), vr(NEGINF), sr(64 + 2 * r, 2))
        if vm:
            e("s_waitcnt vmcnt(0)")
        if wr:
            e(wr)
        if not last:
            e("v_mfma_f32_32x32x16_bf16 {}, {}, {}, {}", vr(nxt, 16), vr(KQ, 4), vr(Q1, 4), vr(CC, 16))
        for r in range(0, 4):
            e("v_exp_f32 {}, {}", vr(PP + r), vr(cur + r))
        if not last:
            e("v_mfma_f32_32x32x16_bf16 {0}, {1}, {2}, {0}", vr(nxt, 16), vr(KQ + 4, 4), vr(Q2, 4))
            if not nok:
                rd_k(e, KQ, a, a2, (off + 2 * step) if k2off is None else k2off)
        for r in range(4, 8):
            e("v_exp_f32 {}, {}", vr(PP + r), vr(cur + r))
        e("s_waitcnt lgkmcnt({})", (1 if wr else 0) if (last or nok) else (3 if wr else 2))
        e("v_mfma_f32_32x32x16_bf16 {0}, {1}, {2}, {0}", vr(OO, 16), vr(VQ, 4), vr(PB, 4))
        for r in range(8, 12):
            e("v_exp_f32 {}, {}", vr(PP + r), vr(cur + r))
        e("v_mfma_f32_32x32x16_bf16 {0}, {1}, {2}, {0}", vr(OO, 16), vr(VQ + 4, 4), vr(PB + 4, 4))
        rd_v(e, VQ, a, off)
        for r in range(12, 16):
            e("v_exp_f32 {}, {}", vr(PP + r), vr(cur + r))
        for r in range(8):
            e("v_cvt_pk_bf16_f32 {}, {}, {}", vr(PB + r), vr(PP + 2 * r), vr(PP + 2 * r + 1))
        if checked:
            e("v_or3_b32 {}, {}, {}, {}", vr(T0), vr(PB), vr(PB + 1), vr(PB + 2))
            e("v_or3_b32 {}, {}, {}, {}", vr(T1), vr(PB + 3), vr(PB + 4), vr(PB + 5))
            e("v_or3_b32 {}, {}, {}, {}", vr(T0), vr(T0), vr(PB + 6), vr(PB + 7))
            e("v_or_b32 {0}, {0}, {1}", vr(T0), vr(T1))
            e("v_and_b32 {0}, 0x40004000, {0}", vr(T0))
            e("v_cmp_ne_u32 vcc, 0, {}", vr(T0))
            e("s_cbranch_vccnz RARE_{}", uid)
            e.lab(f"BACK_{uid}")
            rare.append((cur, nxt, uid))

    def tile_prologue():
        rd_k(e, KQ, AK, AK2, 0)
        for r in range(8):
            e("v_mov_b32 {}, 0", vr(PB + r))
        e("s_waitcnt lgkmcnt(0)")
        qk(e, S0, KQ)
        rd_k(e, KQ, AK, AK2, 1)
        rd_v(e, VQ, AK, 0)
        e("s_nop 9")

    e.lab("K2_TILE")
    e("s_add_u32 s36, s36, 16")
    e("s_cmp_lt_u32 s39, 3")
    e("s_cbranch_scc1 K2_PF")
    e("s_lshl_b32 s40, s30, 3")
    e("s_max_u32 s40, s40, 8")
    e("s_sub_u32 s40, s40, 8")
    e("s_add_u32 s36, s31, s40")
    e("s_add_u32 s36, s36, 2048")
    e.lab("K2_PF")
    stage_load()
    e("s_cmp_lg_u32 s39, 0")
    e("s_cbranch_scc1 K2_NOINIT")
    rd_k(e, KQ, AK, AK2, 0)
    e("s_waitcnt lgkmcnt(0)")
    qk(e, S0, KQ)
    e("s_nop 15")
    rare_path(e, S0, None, "INIT", first=True, ret=False)
    e.lab("K2_NOINIT")
    for r in range(16):
        e("v_mov_b32 {}, {}", vr(OS + r), vr(OO + r))
    e("v_mov_b32 {}, {}", vr(CVS), vr(CVAL))
    tile_prologue()
    import os
    UNR = int(os.environ.get("K2UNR", "16"))
    if UNR == 16:
        e("s_xor_b32 s33, s38, {}", K2_BUF)
        e("v_add_u32 v11, s33, v5")
        e("v_add_u32 v12, s33, v7")
        for i in range(16):
            cur, nxt = (S0, S1) if i % 2 == 0 else (S1, S0)
            wr = None
            if 9 <= i <= 14:
                wr = "ds_write_b128 v11, {} offset:{}".format(vr(STG + 4 * (i - 9), 4), (i - 9) * 8192)
            if i == 15:
                wr = "ds_write_b64 v12, {}".format(vr(STG + 24, 2))
            a_block(i, False, cur, nxt, AK, AK2, i, i == 15, wr=wr, vm=(i == 9))
    else:
        e("s_mov_b32 s41, 0")
        e("v_mov_b32 v13, {}", vr(AK))
        e("v_mov_b32 v14, {}", vr(AK2))
        e.lab("K2_FBLK")
        for i in range(UNR):
            cur, nxt = (S0, S1) if i % 2 == 0 else (S1, S0)
            a_block(i, False, cur, nxt, 13, 14, i, False)
        e("v_add_u32 v13, {}, v13", UNR * 3072)
        e("v_add_u32 v14, {}, v14", UNR * 256)
        e("s_add_u32 s41, s41, 1")
        e("s_cmp_lt_u32 s41, {}", 16 // UNR)
        e("s_cbranch_scc1 K2_FBLK")
    e("s_waitcnt lgkmcnt(0)")
    pv(e, VQ)
    e("s_nop 15")
    e("v_cmp_ngt_f32 vcc, {}, {}", hex(f32bits(THR)), vr(OO + 8))
    e("s_cbranch_vccnz K2_SLOW")
    e.lab("K2_TILE_DONE")
    if STAMPS:
        e("s_memtime s[96:97]")
        e("s_lshl_b32 s98, s2, 3")
        e("s_add_u32 s98, s98, s28")
        e("s_lshl_b32 s98, s98, 6")
        e("s_lshl_b32 s99, s39, 3")
        e("s_add_u32 s98, s98, s99")
        e("s_add_u32 s98, s98, {}", hex(WS_ST + 2 * 4))
        e("s_waitcnt lgkmcnt(0)")
        e("v_mov_b32 v250, s96")
        e("v_mov_b32 v251, s98")
        e("buffer_store_dword v250, v251, s[20:23], 0 offen")
    e("s_waitcnt vmcnt(0) lgkmcnt(0)")
    e("s_xor_b32 s38, s38, {}", K2_BUF)
    if UNR != 16:
        stage_write()
    e("v_lshlrev_b32 {}, 4, v1", vr(AK))
    e("v_add_u32 {0}, s38, {0}", vr(AK))
    e("v_lshlrev_b32 {}, 3, v3", vr(AK2))
    e("v_add_u32 {0}, s38, {0}", vr(AK2))
    e("v_add_u32 {0}, {1}, {0}", vr(AK2), K2_MAIN)
    e("s_waitcnt lgkmcnt(0)")
    e("s_barrier")
    if STAMPS:
        e("s_memtime s[96:97]")
        e("s_lshl_b32 s98, s2, 3")
        e("s_add_u32 s98, s98, s28")
        e("s_lshl_b32 s98, s98, 6")
        e("s_lshl_b32 s99, s39, 3")
        e("s_add_u32 s98, s98, s99")
        e("s_add_u32 s98, s98, {}", hex(WS_ST + 3 * 4))
        e("s_waitcnt lgkmcnt(0)")
        e("v_mov_b32 v250, s96")
        e("v_mov_b32 v251, s98")
        e("buffer_store_dword v250, v251, s[20:23], 0 offen")
    e("s_add_u32 s39, s39, 1")
    e("s_cmp_lt_u32 s39, 4")
    e("s_cbranch_scc1 K2_TILE")
    attn_epilogue(e, 0)
    stamp(e, 10)

    for r in range(4):
        e("v_mov_b32 {}, {}", vr(Q1 + r), vr(QB + r))
    for r in range(2):
        e("v_mov_b32 {}, {}", vr(Q2 + r), vr(QB + 4 + r))
    e("s_lshl_b32 s40, s30, 3")
    e("s_max_u32 s40, s40, 8")
    e("s_sub_u32 s40, s40, 8")
    e("s_sub_u32 s42, s32, s40")
    e("s_min_u32 s47, s32, 8")
    e("s_waitcnt vmcnt(0)")

    def b_addr(sblk):
        e("s_mul_i32 s43, {}, 3072", sblk)
        e("s_lshl_b32 s44, {}, 8", sblk)
        e("v_add_u32 v13, s43, {}", vr(AK))
        e("v_add_u32 v14, s44, {}", vr(AK2))

    def b_pass(checked, tag):
        for r in range(16):
            e("v_mov_b32 {}, 0", vr(CC + r))
            e("v_mov_b32 {}, 0", vr(OO + r))
        e("v_mov_b32 {}, 0", vr(CVAL))
        e("s_min_u32 s48, s47, 1")
        e("s_sub_u32 s48, s42, s48")
        b_addr("s48")
        rd_k(e, KQ, 13, 14, 0)
        rd_v(e, VQ, 13, 0)
        e("s_waitcnt lgkmcnt(2)")
        qk(e, S0, KQ)
        e("s_nop 11")
        e("s_cmp_eq_u32 s47, 0")
        e("s_cbranch_scc0 K2_B1_{}", tag)
        for r in range(16):
            e("v_cndmask_b32 {0}, {1}, {0}, {2}", vr(S0 + r), vr(NEGINF), sr(64 + 2 * r, 2))
        e.lab(f"K2_B1_{tag}")
        rare_path(e, S0, None, "BINIT" + tag, first=True, ret=False)
        e("s_waitcnt lgkmcnt(0)")
        pv(e, VQ)
        e("s_cmp_eq_u32 s47, 0")
        e("s_cbranch_scc1 K2_BDONE_{}", tag)
        e("s_mov_b32 s45, 0")
        e.lab(f"K2_BL_{tag}")
        e("s_sub_u32 s48, s42, s45")
        e("s_sub_u32 s48, s48, 1")
        e("s_cmp_eq_u32 s45, 0")
        e("s_cselect_b32 s48, s42, s48")
        b_addr("s48")
        rd_k(e, KQ, 13, 14, 0)
        rd_v(e, VQ, 13, 0)
        e("s_waitcnt lgkmcnt(2)")
        qk(e, S0, KQ)
        e("s_nop 11")
        e("s_cmp_eq_u32 s45, 0")
        e("s_cbranch_scc0 K2_BND_{}", tag)
        for r in range(16):
            e("v_cndmask_b32 {0}, {1}, {0}, {2}", vr(S0 + r), vr(NEGINF), sr(64 + 2 * r, 2))
        e.lab(f"K2_BND_{tag}")
        e("s_cmp_eq_u32 s45, 7")
        e("s_cbranch_scc0 K2_BNM_{}", tag)
        for r in range(16):
            e("v_cndmask_b32 {0}, {0}, {1}, {2}", vr(S0 + r), vr(NEGINF), sr(64 + 2 * r, 2))
        e.lab(f"K2_BNM_{tag}")
        if checked:
            blk_softmax(e, S0, None, "B", "BM")
            rare.append((S0, None, "BM"))
        else:
            for r in range(16):
                e("v_exp_f32 {}, {}", vr(PP + r), vr(S0 + r))
            for r in range(8):
                e("v_cvt_pk_bf16_f32 {}, {}, {}", vr(PB + r), vr(PP + 2 * r), vr(PP + 2 * r + 1))
        e("s_waitcnt lgkmcnt(0)")
        pv(e, VQ)
        e("s_add_u32 s45, s45, 1")
        e("s_cmp_lt_u32 s45, s47")
        e("s_cbranch_scc1 K2_BL_{}", tag)
        e.lab(f"K2_BDONE_{tag}")

    e("s_cmp_eq_u32 s30, 0")
    e("s_cbranch_scc1 K2_BGEN")
    for r in range(16):
        e("v_mov_b32 {}, 0", vr(CC + r))
        e("v_mov_b32 {}, 0", vr(OO + r))
    e("v_mov_b32 {}, 0", vr(CVAL))
    e("s_sub_u32 s45, s42, 8")
    e("s_mul_i32 s43, s45, 3072")
    e("s_lshl_b32 s44, s45, 8")
    e("v_add_u32 v13, s43, {}", vr(AK))
    e("v_add_u32 v14, s44, {}", vr(AK2))
    order = [7, 8, 6, 5, 4, 3, 2, 1, 0]
    rd_k(e, KQ, 13, 14, order[0])
    e("s_waitcnt lgkmcnt(0)")
    qk(e, S1, KQ)
    rd_k(e, KQ, 13, 14, order[1])
    rd_v(e, VQ, 13, order[0])
    e("s_nop 11")
    rare_path(e, S1, None, "BINITP", first=True, ret=False)
    e("s_waitcnt lgkmcnt(2)")
    qk(e, S0, KQ)
    rd_k(e, KQ, 13, 14, order[2])
    e("s_nop 9")
    e("s_waitcnt lgkmcnt(0)")
    for n in range(1, 9):
        cur, nxt = (S0, S1) if n % 2 == 1 else (S1, S0)
        a_block(n, False, cur, nxt, 13, 14, order[n], n == 8, nok=(n >= 7), premask=(n == 8), diagmask=(n == 1),
                k2off=(order[n + 2] if n + 2 <= 8 else None))
    e("s_waitcnt lgkmcnt(0)")
    pv(e, VQ)
    e("s_branch K2_BCHK")
    e.lab("K2_BGEN")
    b_pass(False, "F")
    e.lab("K2_BCHK")
    e("s_nop 15")
    e("v_cmp_ngt_f32 vcc, {}, {}", hex(f32bits(THR)), vr(OO + 8))
    e("s_cbranch_vccnz K2_BSLOW")
    e.lab("K2_BFIN")
    attn_epilogue(e, 1)
    stamp(e, 11)
    rstamp(e, 13)
    e.lab("K2_END")
    e("s_endpgm")
    e.lab("K2_BSLOW")
    b_pass(True, "S")
    e("s_branch K2_BFIN")
    e.lab("K2_SLOW")
    for r in range(16):
        e("v_mov_b32 {}, {}", vr(OO + r), vr(OS + r))
        e("v_mov_b32 {}, {}", vr(CC + r), vr(CVS))
    e("v_mov_b32 {}, {}", vr(CVAL), vr(CVS))
    tile_prologue()
    e("s_mov_b32 s41, 0")
    e("v_mov_b32 v13, {}", vr(AK))
    e("v_mov_b32 v14, {}", vr(AK2))
    e.lab("K2_BLK")
    for half in range(2):
        cur, nxt = (S0, S1) if half == 0 else (S1, S0)
        a_block(half, True, cur, nxt, 13, 14, half, False, uid=f"A{half}")
    e("v_add_u32 v13, {}, v13", 2 * 3072)
    e("v_add_u32 v14, {}, v14", 2 * 256)
    e("s_add_u32 s41, s41, 1")
    e("s_cmp_lt_u32 s41, 8")
    e("s_cbranch_scc1 K2_BLK")
    e("s_waitcnt lgkmcnt(0)")
    pv(e, VQ)
    e("s_branch K2_TILE_DONE")
    for cur, nxt, uid in rare:
        rare_path(e, cur, nxt, uid)


K3_XH = 64 * 128
K3_WH = 64 * 160
K3_WOFF = 2 * K3_XH
K3_SCR = K3_WOFF + 2 * K3_WH
K3_STAGE = K3_SCR + 1024
K3_LDS = 4 * K3_STAGE


def gen_k3(e):
    N = "oproj_kernel"
    e.raw(f".globl {N}\n.p2align 8\n.type {N},@function\n{N}:")
    e("s_cmp_ge_u32 s2, 256")
    e("s_cbranch_scc1 K3_END")
    e("s_load_dwordx2 s[4:5], s[0:1], 16")
    e("s_load_dwordx2 s[6:7], s[0:1], 40")
    e("s_load_dwordx2 s[8:9], s[0:1], 56")
    e("s_load_dwordx2 s[26:27], s[0:1], 72")
    e("v_and_b32 v1, 63, v0")
    e("v_lshrrev_b32 v2, 6, v0")
    e("s_nop 0")
    e("v_readfirstlane_b32 s28, v2")
    e("s_and_b32 s30, s2, 7")
    e("s_lshr_b32 s29, s2, 3")
    e("s_lshr_b32 s33, s29, 3")
    e("s_and_b32 s29, s29, 7")
    e("s_lshl_b32 s33, s33, 3")
    e("s_add_u32 s30, s30, s33")
    e("s_waitcnt lgkmcnt(0)")
    srd(e, 20, 26, 0x3000000 if STAMPS else WS_SIZE)
    srd(e, 12, 4, 640 * 1280)
    srd(e, 16, 6, 640 * 1280)
    srd(e, 24, 8, 2048 * 1280)
    e("v_lshrrev_b32 v3, 3, v1")
    e("v_and_b32 v4, 7, v1")
    e("v_lshrrev_b32 v5, 4, v1")
    e("s_and_b32 s33, s28, 1")
    e("s_lshl_b32 s33, s33, 2")
    e("v_xor_b32 v5, s33, v5")
    e("v_xor_b32 v4, v4, v5")
    e("s_lshl_b32 s33, s30, 6")
    e("s_lshl_b32 s34, s28, 3")
    e("s_add_u32 s33, s33, s34")
    e("v_add_u32 v6, s33, v3")
    e("v_mul_u32_u24 v6, 2560, v6")
    e("v_lshl_add_u32 v6, v4, 4, v6")
    e("v_add_u32 v120, {}, v6", hex(WS_O))
    for t in range(3):
        e("s_add_u32 s33, s28, {}", 8 * t)
        e("s_cmp_ge_u32 s33, 10")
        e("s_cselect_b32 s34, 1, 0")
        e("s_mul_i32 s35, s34, 10")
        e("s_sub_u32 s35, s33, s35")
        e("s_lshl_b32 s36, s35, 6")
        e("v_add_u32 v5, s36, v1")
        e("v_mul_u32_u24 v6, 6554, v5")
        e("v_lshrrev_b32 v6, 16, v6")
        e("v_mul_u32_u24 v7, 10, v6")
        e("v_sub_u32 v7, v5, v7")
        e("v_mul_u32_u24 v8, 1280, v6")
        e("v_lshl_add_u32 v8, v7, 4, v8")
        e("s_mul_i32 s37, s29, 160")
        e("v_add_u32 {}, s37, v8", vr(121 + t))
        e("s_mul_i32 s37, s34, {}", K3_WH)
        e("s_lshl_b32 s36, s35, 10")
        e("s_add_u32 s37, s37, s36")
        e("s_add_u32 {}, s37, {}", sr(50 + t), K3_WOFF)
        e("s_mov_b32 {}, s34", sr(54 + t))
        if t == 2:
            e("s_cmp_ge_u32 s33, 20")
            e("s_cbranch_scc0 K3_N2OK")
            e("v_mov_b32 {}, {}", vr(123), hex(OOB))
            e("s_mov_b32 s52, {}", K3_SCR)
            e("s_mov_b32 s56, 0")
            e.lab("K3_N2OK")
    for t in range(3):
        e("s_cmp_eq_u32 {}, 1", sr(54 + t))
        for q in range(4):
            e("s_cselect_b32 {}, {}, {}", sr(60 + 4 * t + q), sr(16 + q), sr(12 + q))
    e("s_lshl_b32 s58, s28, 10")
    e("s_lshr_b32 s34, s28, 2")
    e("s_and_b32 s35, s28, 3")
    e("v_and_b32 v3, 15, v1")
    e("v_lshrrev_b32 v4, 4, v1")
    e("s_lshl_b32 s33, s35, 4")
    e("v_add_u32 v5, s33, v3")
    e("v_bfe_u32 v6, v5, 1, 3")
    e("v_lshlrev_b32 v7, 7, v5")
    e("s_mul_i32 s33, s34, {}", K3_XH)
    e("v_add_u32 v7, s33, v7")
    e("v_and_b32 v8, 1, v4")
    e("v_lshl_add_u32 v7, v8, 3, v7")
    e("v_lshrrev_b32 v8, 1, v4")
    for ks in range(2):
        for s2 in range(2):
            e("v_add_u32 v9, {}, v8", 4 * ks + 2 * s2)
            e("v_xor_b32 v9, v9, v6")
            e("v_lshl_add_u32 {}, v9, 4, v7", vr(124 + 2 * ks + s2))
    e("v_bfe_u32 v6, v1, 2, 2")
    e("v_and_b32 v7, 3, v1")
    e("v_lshl_add_u32 v8, v4, 2, v6")
    e("v_mul_u32_u24 v8, 160, v8")
    e("v_lshl_add_u32 v8, v7, 3, v8")
    e("s_mul_i32 s33, s34, {}", K3_WH)
    e("s_add_u32 s33, s33, {}", K3_WOFF)
    e("v_add_u32 v128, s33, v8")
    for st in (1, 2, 3):
        for r in range(5):
            e("v_add_u32 {}, {}, {}", vr(124 + 8 * st + r), st * K3_STAGE, vr(124 + r))
    for r in range(32, 52):
        e("v_mov_b32 {}, 0", vr(r))

    def gload(kc):
        st = (kc % 4) * K3_STAGE
        for i in range(2):
            e("s_add_u32 m0, s58, {}", st + i * K3_XH)
            e("s_movk_i32 s37, {}", kc * 128 + i * 1280)
            e("buffer_load_dwordx4 v120, s[20:23], s37 offen lds")
        for t in range(3):
            e("s_add_u32 m0, {}, {}", sr(50 + t), st)
            e("s_mov_b32 s37, {}", kc * 64 * 1280)
            e("buffer_load_dwordx4 {}, {}, s37 offen lds", vr(121 + t), sr(60 + 4 * t, 4))

    FR = [8, 88]
    def freads(kc, ks, fs):
        b = FR[fs]
        a0 = 124 + 8 * (kc % 4)
        e("ds_read_b64 {}, {}", vr(b, 2), vr(a0 + 2 * ks))
        e("ds_read_b64 {}, {}", vr(b + 2, 2), vr(a0 + 2 * ks + 1))
        for jn in range(5):
            o = ks * 32 * 160 + jn * 32
            e("ds_read_b64_tr_b16 {}, {} offset:{}", vr(b + 4 + 4 * jn, 2), vr(a0 + 4), o)
            e("ds_read_b64_tr_b16 {}, {} offset:{}", vr(b + 4 + 4 * jn + 2, 2), vr(a0 + 4), o + 16 * 160)

    def mf(fs):
        b = FR[fs]
        for jn in range(5):
            e("v_mfma_f32_16x16x32_bf16 {0}, {1}, {2}, {0}", vr(32 + 4 * jn, 4), vr(b + 4 + 4 * jn, 4), vr(b, 4))

    def chunk(kc):
        more = kc + 1 <= 9
        freads(kc, 0, 0)
        freads(kc, 1, 1)
        if kc + 3 <= 9:
            gload(kc + 3)
        e("s_waitcnt lgkmcnt(12)")
        mf(0)
        e("s_waitcnt lgkmcnt(0)")
        mf(1)
        if more:
            e("s_waitcnt vmcnt({})", 10 if kc + 3 <= 9 else (5 if kc + 2 <= 9 else 0))
            e("s_barrier")

    ST_K[0] = 2
    stamp(e, 0)
    gload(0)
    gload(1)
    gload(2)
    e("s_waitcnt vmcnt(10)")
    e("s_barrier")
    stamp(e, 1)
    for kc in range(10):
        chunk(kc)
        stamp(e, 2 + kc)
    e("s_lshl_b32 s33, s30, 6")
    e("s_lshl_b32 s37, s35, 4")
    e("s_add_u32 s33, s33, s37")
    e("v_add_u32 v5, s33, v3")
    e("v_lshlrev_b32 v6, 2, v5")
    e("v_add_u32 v6, {}, v6", hex(WS_G))
    e("buffer_load_dword v7, v6, s[20:23], 0 offen")
    e("s_barrier")
    e("s_waitcnt vmcnt(0)")
    e("s_nop 7")
    e("s_mul_i32 s33, s35, 5120")
    e("v_lshlrev_b32 v8, 4, v1")
    e("v_add_u32 v8, s33, v8")
    e("s_cmp_eq_u32 s34, 0")
    e("s_cbranch_scc1 K3_RED")
    e("v_sub_f32 v7, 1.0, v7")
    for r in range(20):
        e("v_mul_f32 {0}, {0}, v7", vr(32 + r))
    for jn in range(5):
        e("ds_write_b128 v8, {} offset:{}", vr(32 + 4 * jn, 4), jn * 1024)
    e("s_waitcnt lgkmcnt(0)")
    e("s_barrier")
    e("s_branch K3_END")
    e.lab("K3_RED")
    e("s_barrier")
    for jn in range(5):
        e("ds_read_b128 {}, v8 offset:{}", vr(64 + 4 * jn, 4), jn * 1024)
    e("v_mul_u32_u24 v9, 1280, v5")
    e("s_mul_i32 s33, s29, 160")
    e("v_add_u32 v9, s33, v9")
    e("v_lshl_add_u32 v9, v4, 3, v9")
    e("s_waitcnt lgkmcnt(0)")
    for r in range(20):
        e("v_fma_f32 {0}, {0}, v7, {1}", vr(32 + r), vr(64 + r))
    for jn in range(5):
        e("v_cvt_pk_bf16_f32 v10, {}, {}", vr(32 + 4 * jn), vr(32 + 4 * jn + 1))
        e("v_cvt_pk_bf16_f32 v11, {}, {}", vr(32 + 4 * jn + 2), vr(32 + 4 * jn + 3))
        e("buffer_store_dwordx2 v[10:11], v9, s[24:27], 0 offen offset:{}", jn * 32)
        e("s_nop 0")
    e.lab("K3_END")
    e("s_endpgm")


HEADER = """; Kernarg layout (80 bytes): A_x@0 A_wqkv@8 A_wo@16 B_x@24 B_wqkv@32 B_wo@40 gate_w@48 out@56 debug@64 ws@72
; @launch kernel=qkv_kernel grid=(256,1,1) block=(512,1,1) lds={k1}
; @launch kernel=attn_kernel grid=(256,1,1) block=(512,1,1) lds={k2}
; @launch kernel=oproj_kernel grid=(256,1,1) block=(512,1,1) lds={k3}
.amdgcn_target "amdgcn-amd-amdhsa--gfx950"
.text
"""


def main():
    global STAMPS
    STAMPS = "--stamps" in sys.argv
    if STAMPS:
        sys.argv.remove("--stamps")
    e = E()
    gen_k1(e)
    gen_k2(e)
    gen_k3(e)
    out = HEADER.format(k1=K1_LDS, k2=K2_LDS, k3=K3_LDS) + e.text()
    out += '.section .rodata,"a"\n.p2align 6\n'
    out += kd("qkv_kernel", 256).lstrip("\n")
    out += ".p2align 6\n" + kd("attn_kernel", 256 if STAMPS else 244).lstrip("\n")
    out += ".p2align 6\n" + kd("oproj_kernel", 256 if STAMPS else 168).lstrip("\n")
    path = sys.argv[1] if len(sys.argv) > 1 else "gated_mix__mha_block__sliding_block__prompt.s"
    open(path, "w").write(out)


if __name__ == "__main__":
    main()
```
